```python
import torch

def _softmax(x, axis=-1):
    return torch.softmax(x, dim=axis)
def _gelu(x):
    return torch.nn.functional.gelu(x, approximate="tanh")
def _silu(x):
    return torch.nn.functional.silu(x)
def _sigmoid(x):
    return torch.sigmoid(x)
def _layernorm(x, axis=-1, eps=1e-5):
    m = x.mean(dim=axis, keepdim=True)
    v = x.var(dim=axis, keepdim=True, unbiased=False)
    return (x - m) / torch.sqrt(v + eps)
def _scatter_add(tgt, idx, src, axis=0):
    return tgt.clone().index_add_(axis, idx, src)
def _segment_sum(src, seg, n):
    out = torch.zeros((n,) + src.shape[1:], dtype=src.dtype)
    return out.index_add_(0, seg, src)
def _pad(x, pw):
    flat = tuple(v for pair in reversed(pw) for v in pair)
    return torch.nn.functional.pad(x, flat)

kernel_name = 'concat_heads__mha_block_cached__gqa_block_cached__near_ridge'

def setup_inputs():

    _w = (lambda a: (lambda t: t.to(torch.bfloat16) if t.is_floating_point() else t)(torch.as_tensor(a)))
    def _A_setup():
        B, Sq, D = 16, 160, 512
        H, Sk, Dh = 32, 1024, 128
        return {
            "x": _w((lambda *s: torch.randn(*s, dtype=torch.bfloat16) * 0.8)(B, Sq, D)),
            "k_cache": _w((lambda *s: torch.randn(*s, dtype=torch.bfloat16) * 0.8)(B, H, Sk, Dh)),
            "v_cache": _w((lambda *s: torch.randn(*s, dtype=torch.bfloat16) * 0.05)(B, H, Sk, Dh)),
            "wq": _w((lambda *s: torch.randn(*s, dtype=torch.bfloat16) * 0.8)(D, H * Dh) * (D ** -0.5)),
            "wo": _w((lambda *s: torch.randn(*s, dtype=torch.bfloat16) * 0.05)(H * Dh, D) * ((H * Dh) ** -0.5)),
        }
    _A_in = _A_setup()

    def _B_setup():
        B, Sq, D = 16, 160, 512
        Hq, Hkv, Sk, Dh = 32, 32, 1024, 128
        assert Hq % Hkv == 0, (Hq, Hkv)
        return {
            "x": _w((lambda *s: torch.randn(*s, dtype=torch.bfloat16) * 0.8)(B, Sq, D)),
            "k_cache": _w((lambda *s: torch.randn(*s, dtype=torch.bfloat16) * 0.8)(B, Hkv, Sk, Dh)),
            "v_cache": _w((lambda *s: torch.randn(*s, dtype=torch.bfloat16) * 0.05)(B, Hkv, Sk, Dh)),
            "wq": _w((lambda *s: torch.randn(*s, dtype=torch.bfloat16) * 0.8)(D, Hq * Dh) * (D ** -0.5)),
            "wo": _w((lambda *s: torch.randn(*s, dtype=torch.bfloat16) * 0.05)(Hq * Dh, D) * ((Hq * Dh) ** -0.5)),
        }
    _B_in = _B_setup()

    return {
        "A_x": _A_in["x"],
        "A_k_cache": _A_in["k_cache"],
        "A_v_cache": _A_in["v_cache"],
        "A_wq": _A_in["wq"],
        "A_wo": _A_in["wo"],
        "B_x": _B_in["x"],
        "B_k_cache": _B_in["k_cache"],
        "B_v_cache": _B_in["v_cache"],
        "B_wq": _B_in["wq"],
        "B_wo": _B_in["wo"],
    }

def reference(A_x, A_k_cache, A_v_cache, A_wq, A_wo, B_x, B_k_cache, B_v_cache, B_wq, B_wo):
    def _A_ref(x, k_cache, v_cache, wq, wo):
        B, Sq, D = x.shape
        H, Dh = 32, 128
        q = (lambda x, *d: x.permute(*d))((x @ wq).reshape(B, Sq, H, Dh), 0, 2, 1, 3)
        scores = torch.einsum("bhqd,bhkd->bhqk", q, k_cache) * (Dh ** -0.5)
        p = _softmax(scores, axis=-1)
        o = torch.einsum("bhqk,bhkd->bhqd", p, v_cache)
        return (lambda x, *d: x.permute(*d))(o, 0, 2, 1, 3).reshape(B, Sq, H * Dh) @ wo

    def _B_ref(x, k_cache, v_cache, wq, wo):
        B, Sq, D = x.shape
        Hq, Dh = 32, 128
        Hkv = k_cache.shape[1]
        rep = Hq // Hkv
        q = (lambda x, *d: x.permute(*d))((x @ wq).reshape(B, Sq, Hq, Dh), 0, 2, 1, 3)
        k = (lambda x, n, axis: torch.repeat_interleave(x, n, dim=axis))(k_cache, rep, axis=1)
        v = (lambda x, n, axis: torch.repeat_interleave(x, n, dim=axis))(v_cache, rep, axis=1)
        scores = torch.einsum("bhqd,bhkd->bhqk", q, k) * (Dh ** -0.5)
        p = _softmax(scores, axis=-1)
        o = torch.einsum("bhqk,bhkd->bhqd", p, v)
        return (lambda x, *d: x.permute(*d))(o, 0, 2, 1, 3).reshape(B, Sq, Hq * Dh) @ wo

    a = _A_ref(A_x, A_k_cache, A_v_cache, A_wq, A_wo)
    b = _B_ref(B_x, B_k_cache, B_v_cache, B_wq, B_wo)
    return torch.concatenate([a, b], axis=-1)
```

```python
import sys

HEADER = open('concat_heads__mha_block_cached__gqa_block_cached__near_ridge.s.ref').read().split('; Override launch')[0]

class Asm:
    def __init__(self):
        self.lines = []
        self.lbl = 0
    def __call__(self, s):
        self.lines.append('    ' + s)
    def label(self, name):
        self.lines.append(name + ':')
    def newlabel(self, p='L'):
        self.lbl += 1
        return f'{p}_{self.lbl}'
    def comment(self, s):
        self.lines.append('    ; ' + s)
    def text(self):
        return '\n'.join(self.lines) + '\n'

def vr(base, n=1):
    return f'v{base}' if n == 1 else f'v[{base}:{base+n-1}]'
def sr(base, n=1):
    return f's{base}' if n == 1 else f's[{base}:{base+n-1}]'

NSLOT = 4
SLOTB = 16384
SCALE_LOG2E = (128 ** -0.5) * 1.4426950408889634
THR_RAW = 8.0 / SCALE_LOG2E

import struct
def f32hex(x):
    return '0x%08x' % struct.unpack('<I', struct.pack('<f', x))[0]

def gen_attn(a):
    V_DMA = 1
    V_DMAW = 5
    V_XOFF = 6
    V_TR = 7
    V_KADDR = 11
    V_M = 12
    V_L = 13
    V_MC = 14
    V_T0 = 15
    V_FR = 16
    V_S = 48
    V_Q = 64
    V_X = 48
    V_ACC = 96
    V_T1 = 160
    V_T2 = 161
    V_T3 = 162
    V_KA2 = 163
    V_OOFF = 164
    NV = 168
    S_W = 4
    S_X = 8
    S_WQ = 12
    S_KV = 16
    S_O = 20
    S_M0B = 24
    S_SOFF = 25
    S_T = 26
    S_CNT = 27
    S_C = 28
    S_THR = 29
    S_WQB = 30
    S_KVB = 31
    S_ISLD = 33
    P = 40
    a.label('attn_kernel')
    a('s_cmp_ge_u32 s2, 1024')
    a('s_cbranch_scc1 attn_end')
    a(f's_load_dwordx16 s[{P}:{P+15}], s[0:1], 0')
    a(f's_load_dwordx4 s[{P+16}:{P+19}], s[0:1], 64')
    a(f's_load_dwordx2 s[{P+20}:{P+21}], s[0:1], 96')
    a('v_lshrrev_b32 v1, 6, v0')
    a('v_and_b32 v0, 63, v0')
    a('s_lshr_b32 s3, s2, 9')
    a('v_readfirstlane_b32 s4, v1')
    a('s_lshr_b32 s5, s2, 5')
    a('s_and_b32 s5, s5, 15')
    a('s_and_b32 s6, s2, 31')
    a('s_waitcnt lgkmcnt(0)')
    a('s_cmp_eq_u32 s3, 0')
    a(f's_cselect_b64 s[64:65], s[{P}:{P+1}], s[{P+10}:{P+11}]')
    a(f's_cselect_b64 s[66:67], s[{P+2}:{P+3}], s[{P+12}:{P+13}]')
    a(f's_cselect_b64 s[68:69], s[{P+4}:{P+5}], s[{P+14}:{P+15}]')
    a(f's_cselect_b64 s[70:71], s[{P+6}:{P+7}], s[{P+16}:{P+17}]')
    a('s_cmp_lt_u32 s4, 2')
    a('s_cselect_b64 s[66:67], s[66:67], s[68:69]')
    a('s_mul_i32 s7, s5, 163840')
    a(f's_add_u32 s{S_X}, s64, s7')
    a(f's_addc_u32 s{S_X+1}, s65, 0')
    a(f's_mov_b32 s{S_X+2}, 163840')
    a(f's_mov_b32 s{S_X+3}, 0x00020000')
    a('s_lshl_b32 s7, s6, 8')
    a(f's_add_u32 s{S_WQ}, s70, s7')
    a(f's_addc_u32 s{S_WQ+1}, s71, 0')
    a(f's_sub_u32 s{S_WQ+2}, 4194304, s7')
    a(f's_mov_b32 s{S_WQ+3}, 0x00020000')
    a('s_and_b32 s7, s2, 511')
    a('s_lshl_b32 s7, s7, 18')
    a(f's_add_u32 s{S_KV}, s66, s7')
    a(f's_addc_u32 s{S_KV+1}, s67, 0')
    a(f's_mov_b32 s{S_KV+2}, 262144')
    a(f's_mov_b32 s{S_KV+3}, 0x00020000')
    a('s_mul_i32 s7, s3, 20971520')
    a('s_mul_i32 s34, s5, 1310720')
    a('s_add_u32 s7, s7, s34')
    a('s_lshl_b32 s34, s6, 8')
    a('s_add_u32 s7, s7, s34')
    a(f's_add_u32 s{S_O}, s{P+20}, s7')
    a(f's_addc_u32 s{S_O+1}, s{P+21}, 0')
    a(f's_sub_u32 s{S_O+2}, 1310720, s34')
    a(f's_mov_b32 s{S_O+3}, 0x00020000')
    a(f's_lshl_b32 s{S_M0B}, s4, 12')
    a(f's_lshl_b32 s{S_WQB}, s4, 17')
    a(f's_and_b32 s{S_KVB}, s4, 1')
    a(f's_lshl_b32 s{S_KVB}, s{S_KVB}, 12')
    a(f's_mov_b32 s{S_C}, {f32hex(SCALE_LOG2E)}')
    a(f's_mov_b32 s{S_THR}, {f32hex(THR_RAW)}')
    a('v_lshrrev_b32 v16, 4, v0')
    a('v_and_b32 v17, 15, v0')
    a('v_lshlrev_b32 v18, 1, v16')
    a('v_xor_b32 v18, v17, v18')
    a('v_lshlrev_b32 v18, 4, v18')
    a(f'v_lshl_add_u32 v{V_DMAW}, v16, 13, v18')
    a('v_lshl_add_u32 v19, v16, 8, v18')
    a('v_xor_b32 v20, v17, v16')
    a('s_cmp_lt_u32 s4, 2')
    a('s_cselect_b64 vcc, -1, 0')
    for i in range(4):
        a(f'v_xor_b32 v21, {4*i}, v20')
        a('v_lshlrev_b32 v21, 4, v21')
        a('v_lshl_add_u32 v21, v16, 8, v21')
        a(f'v_cndmask_b32 v{V_DMA+i}, v19, v21, vcc')
    a('v_and_b32 v16, 31, v0')
    a('v_lshrrev_b32 v17, 5, v0')
    a('v_lshlrev_b32 v18, 6, v17')
    a(f'v_lshl_add_u32 v{V_XOFF}, v16, 10, v18')
    a('v_lshlrev_b32 v18, 7, v17')
    a(f'v_lshl_add_u32 v{V_OOFF}, v16, 13, v18')
    a(f's_lshl_b32 s7, s4, 15')
    a(f'v_add_u32 v{V_XOFF}, s7, v{V_XOFF}')
    a(f's_lshl_b32 s7, s4, 18')
    a(f'v_add_u32 v{V_OOFF}, s7, v{V_OOFF}')
    a('v_and_b32 v18, 15, v16')
    a('v_lshlrev_b32 v19, 3, v17')
    a('v_xor_b32 v18, v18, v19')
    a('v_lshlrev_b32 v18, 4, v18')
    a(f'v_lshl_add_u32 v{V_KADDR}, v16, 8, v18')
    a('v_bfe_u32 v18, v0, 2, 2')
    a('v_and_b32 v19, 3, v0')
    a('v_bfe_u32 v20, v0, 4, 1')
    a('v_and_b32 v21, 1, v19')
    a('v_lshlrev_b32 v21, 7, v21')
    a('v_lshl_add_u32 v21, v20, 4, v21')
    a('v_lshrrev_b32 v22, 1, v19')
    a('v_lshl_add_u32 v21, v22, 3, v21')
    a('v_lshl_add_u32 v21, v18, 8, v21')
    a('v_lshl_add_u32 v21, v17, 13, v21')
    for mt in range(4):
        a(f'v_xor_b32 v22, {mt}, v18')
        a(f'v_lshl_add_u32 v{V_TR+mt}, v22, 5, v21')
    a(f'v_lshlrev_b32 v{V_T3}, 10, v17')
    a(f'v_lshlrev_b32 v{V_T2}, 13, v17')
    a(f'v_sub_u32 v{V_T3}, v{V_T2}, v{V_T3}')
    for i in range(64):
        a(f'v_mov_b32 v{V_ACC+i}, 0')

    NST = 40
    def dma(stage):
        lab = a.newlabel('nodma')
        a(f's_cmp_gt_u32 s{S_W}, 3')
        a(f's_cbranch_scc1 {lab}')
        slot = stage % NSLOT
        a(f's_add_u32 m0, s{S_M0B}, {slot*SLOTB}')
        if stage < 8:
            a(f's_add_u32 s{S_SOFF}, s{S_WQB}, {stage*524288}')
            for i in range(4):
                a(f'buffer_load_dwordx4 v{V_DMAW}, s[{S_WQ}:{S_WQ+3}], s{S_SOFF} offen offset:{1024*i} lds')
                if i < 3:
                    a(f's_add_u32 s{S_SOFF}, s{S_SOFF}, 31744')
        else:
            t = stage - 8
            a(f's_add_u32 s{S_SOFF}, s{S_KVB}, {t*8192}')
            for i in range(4):
                a(f'buffer_load_dwordx4 v{V_DMA+i}, s[{S_KV}:{S_KV+3}], s{S_SOFF} offen offset:{1024*i} lds')
        a.label(lab)
    def dma_loop(slot):
        lab = a.newlabel('nodma')
        a(f's_cmp_gt_u32 s{S_W}, 3')
        a(f's_cbranch_scc1 {lab}')
        a(f's_add_u32 m0, s{S_M0B}, {slot*SLOTB}')
        a('s_nop 0')
        for i in range(4):
            a(f'buffer_load_dwordx4 v{V_DMA+i}, s[{S_KV}:{S_KV+3}], s{S_T} offen offset:{1024*i} lds')
        a.label(lab)
    def xload(stage):
        base = V_X + 16 * (stage % 3)
        for u in range(4):
            a(f'buffer_load_dwordx4 v[{base+4*u}:{base+4*u+3}], v{V_XOFF}, s[{S_X}:{S_X+3}], 0 offen offset:{128*stage+16*u}')
    def wait2(nl, nn):
        if nl == nn:
            a(f's_waitcnt vmcnt({nl})')
            return
        l1 = a.newlabel('w4'); l2 = a.newlabel('wj')
        a(f's_cmp_gt_u32 s{S_W}, 3')
        a(f's_cbranch_scc1 {l1}')
        a(f's_waitcnt vmcnt({nl})')
        a(f's_branch {l2}')
        a.label(l1)
        a(f's_waitcnt vmcnt({nn})')
        a.label(l2)

    for s in range(3):
        dma(s)
        xload(s)
    for s in range(8):
        a.comment(f'==== Q stage {s}')
        nl = 0; nn = 0
        for t in (s+1, s+2):
            nl += 4
            if t < 8:
                nl += 4; nn += 4
        wait2(nl, nn)
        a('s_barrier')
        dma(s + 3)
        slot = s % NSLOT
        xb = V_X + 16 * (s % 3)
        def rd(u):
            fb = V_FR + 16 * (u % 2)
            for mt in range(4):
                for part in range(2):
                    a(f'ds_read_b64_tr_b16 v[{fb+4*mt+2*part}:{fb+4*mt+2*part+1}], v{V_TR+mt} offset:{slot*SLOTB + (8*u+4*part)*256}')
        rd(0)
        for u in range(4):
            if u < 3:
                rd(u + 1)
                a('s_waitcnt lgkmcnt(8)')
            else:
                a('s_waitcnt lgkmcnt(0)')
            fb = V_FR + 16 * (u % 2)
            for mt in range(4):
                a(f'v_mfma_f32_32x32x16_bf16 v[{V_ACC+16*mt}:{V_ACC+16*mt+15}], v[{fb+4*mt}:{fb+4*mt+3}], v[{xb+4*u}:{xb+4*u+3}], v[{V_ACC+16*mt}:{V_ACC+16*mt+15}]')
        if s + 3 < 8:
            xload(s + 3)
    a('s_nop 15')
    for p in range(32):
        a(f'v_cvt_pk_bf16_f32 v{V_Q+p}, v{V_ACC+2*p}, v{V_ACC+2*p+1}')
    for i in range(64):
        a(f'v_mov_b32 v{V_ACC+i}, 0')
    for mt in range(4):
        a(f'v_sub_u32 v{V_TR+mt}, v{V_TR+mt}, v{V_T3}')
    a(f'v_mov_b32 v{V_M}, 0xf149f2ca')
    a(f'v_mov_b32 v{V_MC}, 0xf149f2ca')
    a(f'v_mov_b32 v{V_L}, 0')

    def att_stage(slot):
        sb = slot * SLOTB
        for ks in range(8):
            if ks == 0:
                a(f'ds_read_b128 v[{V_FR}:{V_FR+3}], v{V_KADDR} offset:{sb}')
            else:
                a(f'v_xor_b32 v{V_KA2}, {16*ks}, v{V_KADDR}')
                a(f'ds_read_b128 v[{V_FR+4*ks}:{V_FR+4*ks+3}], v{V_KA2} offset:{sb}')
        for ks in range(8):
            a(f's_waitcnt lgkmcnt({7-ks})')
            c = '0' if ks == 0 else f'v[{V_S}:{V_S+15}]'
            a(f'v_mfma_f32_32x32x16_bf16 v[{V_S}:{V_S+15}], v[{V_FR+4*ks}:{V_FR+4*ks+3}], v[{V_Q+4*ks}:{V_Q+4*ks+3}], {c}')
        for ks in range(2):
            for mt in range(4):
                for part in range(2):
                    fb = V_FR + 4 * (4 * ks + mt) + 2 * part
                    a(f'ds_read_b64_tr_b16 v[{fb}:{fb+1}], v{V_TR+mt} offset:{sb + 8192 + (16*ks+8*part)*256}')
        S = V_S
        a(f'v_max3_f32 v{V_T0}, v{S}, v{S+1}, v{S+2}')
        a(f'v_max3_f32 v{V_T1}, v{S+3}, v{S+4}, v{S+5}')
        for i in range(6, 16, 4):
            a(f'v_max3_f32 v{V_T0}, v{V_T0}, v{S+i}, v{S+i+1}')
            if i + 3 < 16:
                a(f'v_max3_f32 v{V_T1}, v{V_T1}, v{S+i+2}, v{S+i+3}')
        a(f'v_max_f32 v{V_T0}, v{V_T0}, v{V_T1}')
        a(f'v_mov_b32 v{V_T1}, v{V_T0}')
        a('s_nop 1')
        a(f'v_permlane32_swap_b32 v{V_T0}, v{V_T1}')
        a(f'v_max_f32 v{V_T0}, v{V_T0}, v{V_T1}')
        a(f'v_add_f32 v{V_T1}, s{S_THR}, v{V_M}')
        a(f'v_cmp_gt_f32 vcc, v{V_T0}, v{V_T1}')
        lab = a.newlabel('norescale')
        a(f's_cbranch_vccz {lab}')
        a(f'v_max_f32 v{V_T0}, v{V_T0}, v{V_M}')
        a(f'v_sub_f32 v{V_T1}, v{V_M}, v{V_T0}')
        a(f'v_mul_f32 v{V_T1}, s{S_C}, v{V_T1}')
        a(f'v_exp_f32 v{V_T1}, v{V_T1}')
        a(f'v_mov_b32 v{V_M}, v{V_T0}')
        a(f'v_mul_f32 v{V_MC}, s{S_C}, v{V_T0}')
        a(f'v_mul_f32 v{V_L}, v{V_L}, v{V_T1}')
        for i in range(64):
            a(f'v_mul_f32 v{V_ACC+i}, v{V_ACC+i}, v{V_T1}')
        a.label(lab)
        for i in range(16):
            a(f'v_fma_f32 v{S+i}, v{S+i}, s{S_C}, -v{V_MC}')
        for i in range(16):
            a(f'v_exp_f32 v{S+i}, v{S+i}')
        a(f'v_add_f32 v{V_T0}, v{S}, v{S+1}')
        a(f'v_add_f32 v{V_T1}, v{S+2}, v{S+3}')
        for i in range(4, 16, 2):
            tt = V_T0 if (i // 2) % 2 == 0 else V_T1
            a(f'v_add_f32 v{tt}, v{tt}, v{S+i}')
            a(f'v_add_f32 v{tt}, v{tt}, v{S+i+1}')
        for p in range(8):
            a(f'v_cvt_pk_bf16_f32 v{S+p}, v{S+2*p}, v{S+2*p+1}')
        a(f'v_add_f32 v{V_T0}, v{V_T0}, v{V_T1}')
        a(f'v_add_f32 v{V_L}, v{V_L}, v{V_T0}')
        for ks in range(2):
            for mt in range(4):
                n = 4 * ks + mt
                a(f's_waitcnt lgkmcnt({2*(7-n)})')
                fb = V_FR + 4 * n
                a(f'v_mfma_f32_32x32x16_bf16 v[{V_ACC+16*mt}:{V_ACC+16*mt+15}], v[{fb}:{fb+3}], v[{S+4*ks}:{S+4*ks+3}], v[{V_ACC+16*mt}:{V_ACC+16*mt+15}]')

    a(f's_add_u32 s{S_T}, s{S_KVB}, {3*8192}')
    a(f's_mov_b32 s{S_CNT}, 0')
    a.label('att_loop')
    for sl in range(4):
        a.comment(f'==== att stage slot {sl}')
        a('s_waitcnt vmcnt(8)')
        a('s_barrier')
        dma_loop((sl + 3) % 4)
        a(f's_add_u32 s{S_T}, s{S_T}, 8192')
        att_stage(sl)
    a(f's_add_u32 s{S_CNT}, s{S_CNT}, 1')
    a(f's_cmp_lt_u32 s{S_CNT}, 7')
    a('s_cbranch_scc1 att_loop')
    for t in range(28, 32):
        a.comment(f'==== att stage {t} (tail)')
        rem = min(t + 2, 31) - t
        a(f's_waitcnt vmcnt({4*rem})')
        a('s_barrier')
        if t + 3 < 32:
            dma_loop((t + 3) % 4)
        att_stage(t % 4)
    a('s_nop 15')
    a(f'v_mov_b32 v{V_T1}, v{V_L}')
    a('s_nop 1')
    a(f'v_permlane32_swap_b32 v{V_L}, v{V_T1}')
    a(f'v_add_f32 v{V_L}, v{V_L}, v{V_T1}')
    a(f'v_rcp_f32 v{V_L}, v{V_L}')
    a('s_nop 0')
    for i in range(64):
        a(f'v_mul_f32 v{V_ACC+i}, v{V_ACC+i}, v{V_L}')
    for p in range(32):
        a(f'v_cvt_pk_bf16_f32 v{V_ACC+p}, v{V_ACC+2*p}, v{V_ACC+2*p+1}')
    for n in range(8):
        a(f'buffer_store_dwordx4 v[{V_ACC+4*n}:{V_ACC+4*n+3}], v{V_OOFF}, s[{S_O}:{S_O+3}], 0 offen offset:{16*n}')
    a.label('attn_end')
    a('s_endpgm')
    return NV

def gen_oproj(a):
    V_DMAW = 1
    V_AOFF = 2
    V_TR = 3
    V_OOFF = 5
    V_FR = 8
    V_B = 40
    V_ACC = 104
    NV = 136
    S_W = 4
    S_A = 8; S_WO = 12; S_OUT = 16
    S_M0B = 20; S_SOFF = 21; S_WB = 22; S_CNT = 23; S_KOFF = 24; S_AOFF = 25
    a.label('oproj_kernel')
    a('s_cmp_ge_u32 s2, 256')
    a('s_cbranch_scc1 oproj_end')
    a('s_load_dwordx2 s[40:41], s[0:1], 32')
    a('s_load_dwordx2 s[42:43], s[0:1], 72')
    a('s_load_dwordx2 s[44:45], s[0:1], 80')
    a('s_load_dwordx2 s[46:47], s[0:1], 96')
    a('v_lshrrev_b32 v1, 6, v0')
    a('v_and_b32 v0, 63, v0')
    a('s_lshr_b32 s3, s2, 7')
    a('v_readfirstlane_b32 s4, v1')
    a('s_lshr_b32 s5, s2, 3')
    a('s_and_b32 s5, s5, 15')
    a('s_and_b32 s6, s2, 7')
    a('s_waitcnt lgkmcnt(0)')
    a('s_cmp_eq_u32 s3, 0')
    a('s_cselect_b64 s[40:41], s[40:41], s[42:43]')
    a('s_mul_i32 s7, s3, 20971520')
    a('s_mul_i32 s34, s5, 1310720')
    a('s_add_u32 s7, s7, s34')
    a(f's_add_u32 s{S_A}, s46, s7')
    a(f's_addc_u32 s{S_A+1}, s47, 0')
    a(f's_mov_b32 s{S_A+2}, 1310720')
    a(f's_mov_b32 s{S_A+3}, 0x00020000')
    a('s_lshl_b32 s7, s6, 7')
    a(f's_add_u32 s{S_WO}, s40, s7')
    a(f's_addc_u32 s{S_WO+1}, s41, 0')
    a(f's_sub_u32 s{S_WO+2}, 4194304, s7')
    a(f's_mov_b32 s{S_WO+3}, 0x00020000')
    a('s_mul_i32 s34, s5, 327680')
    a('s_lshl_b32 s35, s3, 10')
    a('s_add_u32 s35, s35, s7')
    a('s_add_u32 s34, s34, s35')
    a(f's_add_u32 s{S_OUT}, s44, s34')
    a(f's_addc_u32 s{S_OUT+1}, s45, 0')
    a(f's_sub_u32 s{S_OUT+2}, 327680, s35')
    a(f's_mov_b32 s{S_OUT+3}, 0x00020000')
    a(f's_lshl_b32 s{S_M0B}, s4, 11')
    a(f's_lshl_b32 s{S_WB}, s4, 14')
    a('v_lshrrev_b32 v16, 3, v0')
    a('v_and_b32 v17, 7, v0')
    a('v_bfe_u32 v18, v16, 1, 1')
    a('v_lshlrev_b32 v18, 1, v18')
    a('v_xor_b32 v18, v17, v18')
    a('v_lshlrev_b32 v18, 4, v18')
    a(f'v_lshl_add_u32 v{V_DMAW}, v16, 10, v18')
    a('v_and_b32 v16, 31, v0')
    a('v_lshrrev_b32 v17, 5, v0')
    a('v_lshlrev_b32 v18, 6, v17')
    a(f'v_lshl_add_u32 v{V_AOFF}, v16, 13, v18')
    a(f'v_lshl_add_u32 v{V_OOFF}, v16, 11, v18')
    a('s_lshl_b32 s7, s4, 18')
    a(f'v_add_u32 v{V_AOFF}, s7, v{V_AOFF}')
    a('s_lshl_b32 s7, s4, 16')
    a(f'v_add_u32 v{V_OOFF}, s7, v{V_OOFF}')
    a('v_bfe_u32 v18, v0, 2, 2')
    a('v_and_b32 v19, 3, v0')
    a('v_bfe_u32 v20, v0, 4, 1')
    a('v_and_b32 v21, 1, v19')
    a('v_lshlrev_b32 v21, 6, v21')
    a('v_lshl_add_u32 v21, v20, 4, v21')
    a('v_lshrrev_b32 v22, 1, v19')
    a('v_lshl_add_u32 v21, v22, 3, v21')
    a('v_lshl_add_u32 v21, v18, 7, v21')
    a('v_lshl_add_u32 v21, v17, 12, v21')
    a('v_lshrrev_b32 v18, 1, v18')
    for mt in range(2):
        a(f'v_xor_b32 v22, {mt}, v18')
        a(f'v_lshl_add_u32 v{V_TR+mt}, v22, 5, v21')
    for i in range(32):
        a(f'v_mov_b32 v{V_ACC+i}, 0')
    SL = 8192
    def issue(slot):
        lab = a.newlabel('nodma')
        a(f's_cmp_gt_u32 s{S_W}, 3')
        a(f's_cbranch_scc1 {lab}')
        a(f's_add_u32 m0, s{S_M0B}, {slot*SL}')
        a(f's_add_u32 s{S_SOFF}, s{S_WB}, s{S_KOFF}')
        a(f'buffer_load_dwordx4 v{V_DMAW}, s[{S_WO}:{S_WO+3}], s{S_SOFF} offen lds')
        a(f's_add_u32 s{S_SOFF}, s{S_SOFF}, 7168')
        a(f'buffer_load_dwordx4 v{V_DMAW}, s[{S_WO}:{S_WO+3}], s{S_SOFF} offen offset:1024 lds')
        a.label(lab)
        for u in range(4):
            a(f'buffer_load_dwordx4 v[{V_B+16*slot+4*u}:{V_B+16*slot+4*u+3}], v{V_AOFF}, s[{S_A}:{S_A+3}], s{S_AOFF} offen offset:{16*u}')
        a(f's_add_u32 s{S_KOFF}, s{S_KOFF}, 65536')
        a(f's_add_u32 s{S_AOFF}, s{S_AOFF}, 128')
    def wait2(nl, nn):
        if nl == nn:
            a(f's_waitcnt vmcnt({nl})'); return
        l1 = a.newlabel('w4'); l2 = a.newlabel('wj')
        a(f's_cmp_gt_u32 s{S_W}, 3')
        a(f's_cbranch_scc1 {l1}')
        a(f's_waitcnt vmcnt({nl})')
        a(f's_branch {l2}')
        a.label(l1)
        a(f's_waitcnt vmcnt({nn})')
        a.label(l2)
    def stage(slot):
        def rd(u):
            fb = V_FR + 8 * (u % 4)
            for mt in range(2):
                for part in range(2):
                    a(f'ds_read_b64_tr_b16 v[{fb+4*mt+2*part}:{fb+4*mt+2*part+1}], v{V_TR+mt} offset:{slot*SL + (8*u+4*part)*128}')
        for u in range(4):
            rd(u)
        for u in range(4):
            a(f's_waitcnt lgkmcnt({4*(3-u)})')
            fb = V_FR + 8 * u
            for mt in range(2):
                a(f'v_mfma_f32_32x32x16_bf16 v[{V_ACC+16*mt}:{V_ACC+16*mt+15}], v[{fb+4*mt}:{fb+4*mt+3}], v[{V_B+16*slot+4*u}:{V_B+16*slot+4*u+3}], v[{V_ACC+16*mt}:{V_ACC+16*mt+15}]')
    a(f's_mov_b32 s{S_KOFF}, 0')
    a(f's_mov_b32 s{S_AOFF}, 0')
    for s in range(3):
        issue(s)
    a(f's_mov_b32 s{S_CNT}, 0')
    a.label('op_loop')
    for sl in range(4):
        wait2(12, 8)
        a('s_barrier')
        issue((sl + 3) % 4)
        stage(sl)
    a(f's_add_u32 s{S_CNT}, s{S_CNT}, 1')
    a(f's_cmp_lt_u32 s{S_CNT}, 15')
    a('s_cbranch_scc1 op_loop')
    for t in range(60, 64):
        rem = min(t + 2, 63) - t
        wait2(6 * rem, 4 * rem)
        a('s_barrier')
        if t + 3 < 64:
            issue((t + 3) % 4)
        stage(t % 4)
    a('s_nop 15')
    for p in range(16):
        a(f'v_cvt_pk_bf16_f32 v{V_ACC+p}, v{V_ACC+2*p}, v{V_ACC+2*p+1}')
    for n in range(4):
        a(f'buffer_store_dwordx4 v[{V_ACC+4*n}:{V_ACC+4*n+3}], v{V_OOFF}, s[{S_OUT}:{S_OUT+3}], 0 offen offset:{16*n}')
    a.label('oproj_end')
    a('s_endpgm')
    return NV

def kd(name, nv):
    return f""".section .rodata,"a"
.p2align 6
.amdhsa_kernel {name}
  .amdhsa_next_free_vgpr {nv}
  .amdhsa_next_free_sgpr 96
  .amdhsa_accum_offset {(nv+3)//4*4}
  .amdhsa_group_segment_fixed_size 0
  .amdhsa_kernarg_size 104
  .amdhsa_user_sgpr_count 2
  .amdhsa_user_sgpr_kernarg_segment_ptr 1
  .amdhsa_system_sgpr_workgroup_id_x 1
.end_amdhsa_kernel
"""

def main():
    out = HEADER
    out += '; @launch kernel=attn_kernel grid=(1024,1,1) block=(320,1,1) lds=65536\n'
    out += '; @launch kernel=oproj_kernel grid=(256,1,1) block=(320,1,1) lds=32768\n'
    out += '.amdgcn_target "amdgcn-amd-amdhsa--gfx950"\n.text\n'
    a = Asm()
    nv1 = gen_attn(a)
    out += '.globl attn_kernel\n.p2align 8\n.type attn_kernel,@function\n' + a.text()
    a = Asm(); a.lbl = 10000
    nv2 = gen_oproj(a)
    out += '.globl oproj_kernel\n.p2align 8\n.type oproj_kernel,@function\n' + a.text()
    out += kd('attn_kernel', nv1) + kd('oproj_kernel', nv2)
    open(sys.argv[1] if len(sys.argv) > 1 else 'concat_heads__mha_block_cached__gqa_block_cached__near_ridge.s', 'w').write(out)

main()
```

```python
import sys, os
EXP = os.environ.get('EXP','')

HEADER = open('concat_heads__mha_block_cached__gqa_block_cached__near_ridge.s.ref').read().split('; Override launch')[0]

class Asm:
    def __init__(self):
        self.lines = []
        self.lbl = 0
    def __call__(self, s):
        if 'nolds' in EXP and s.startswith('ds_read'): return
        if 'nobar' in EXP and s.startswith('s_barrier'): return
        if 'nomfma' in EXP and s.startswith('v_mfma'): return
        self.lines.append('    ' + s)
    def label(self, name):
        self.lines.append(name + ':')
    def newlabel(self, p='L'):
        self.lbl += 1
        return f'{p}_{self.lbl}'
    def comment(self, s):
        self.lines.append('    ; ' + s)
    def text(self):
        return '\n'.join(self.lines) + '\n'

def vr(base, n=1):
    return f'v{base}' if n == 1 else f'v[{base}:{base+n-1}]'
def sr(base, n=1):
    return f's{base}' if n == 1 else f's[{base}:{base+n-1}]'

NSLOT = 4
SLOTB = 16384
SCALE_LOG2E = (128 ** -0.5) * 1.4426950408889634
THR_RAW = 8.0 / SCALE_LOG2E

import struct
def f32hex(x):
    return '0x%08x' % struct.unpack('<I', struct.pack('<f', x))[0]

KVF = ' nt'
for f in ('sc0','sc1','nt'):
    if 'kv'+f in EXP: KVF += ' '+f
def gen_attn(a):
    V_DMA = 1
    V_TR = 5
    V_KADDR = 9
    V_M = 10
    V_L = 11
    V_MC = 12
    V_T0 = 13
    V_T1 = 14
    V_T2 = 15
    V_DMAW = 13
    V_XOFF = 14
    V_FR = 16
    NFR = 6
    V_S = 40
    V_Q = 72
    V_X = 40
    V_ACC = 104
    NV = 168
    S_W = 4; S_X = 8; S_WQ = 12; S_KV = 16; S_O = 20
    S_M0B = 24; S_SOFF = 25; S_T = 26; S_CNT = 27; S_C = 28; S_THR = 29; S_WQB = 30; S_KVB = 31; S_ROT = 33
    P = 40
    a.label('attn_kernel')
    a('s_cmp_ge_u32 s2, 512')
    a('s_cbranch_scc1 attn_end')
    a(f's_load_dwordx16 s[{P}:{P+15}], s[0:1], 0')
    a(f's_load_dwordx4 s[{P+16}:{P+19}], s[0:1], 64')
    a(f's_load_dwordx2 s[{P+20}:{P+21}], s[0:1], 96')
    if 'timing' in EXP:
        a('s_memtime s[80:81]')
        a('s_memrealtime s[82:83]')
        a('s_load_dwordx2 s[88:89], s[0:1], 88')
    a('v_lshrrev_b32 v1, 6, v0')
    a('v_and_b32 v0, 63, v0')
    a('s_nop 0')
    a('v_readfirstlane_b32 s4, v1')
    a('s_nop 3')
    a('s_lshl_b32 s2, s2, 1')
    a('s_cmp_ge_u32 s4, 5')
    a('s_cselect_b32 s35, 1, 0')
    a('s_add_u32 s2, s2, s35')
    a('s_mul_i32 s7, s35, 5')
    a('s_sub_u32 s4, s4, s7')
    a('s_mul_i32 s35, s35, 81920')
    a('s_lshr_b32 s3, s2, 9')
    a('s_lshr_b32 s5, s2, 5')
    a('s_and_b32 s5, s5, 15')
    a('s_and_b32 s6, s2, 31')
    a('s_waitcnt lgkmcnt(0)')
    a('s_cmp_eq_u32 s3, 0')
    a(f's_cselect_b64 s[64:65], s[{P}:{P+1}], s[{P+10}:{P+11}]')
    a(f's_cselect_b64 s[66:67], s[{P+2}:{P+3}], s[{P+12}:{P+13}]')
    a(f's_cselect_b64 s[68:69], s[{P+4}:{P+5}], s[{P+14}:{P+15}]')
    a(f's_cselect_b64 s[70:71], s[{P+6}:{P+7}], s[{P+16}:{P+17}]')
    a('s_cmp_lt_u32 s4, 2')
    a('s_cselect_b64 s[66:67], s[66:67], s[68:69]')
    a('s_mul_i32 s7, s5, 163840')
    a(f's_add_u32 s{S_X}, s64, s7')
    a(f's_addc_u32 s{S_X+1}, s65, 0')
    a(f's_mov_b32 s{S_X+2}, 163840')
    a(f's_mov_b32 s{S_X+3}, 0x00020000')
    a('s_lshl_b32 s7, s6, 8')
    a(f's_add_u32 s{S_WQ}, s70, s7')
    a(f's_addc_u32 s{S_WQ+1}, s71, 0')
    a(f's_sub_u32 s{S_WQ+2}, 4194304, s7')
    a(f's_mov_b32 s{S_WQ+3}, 0x00020000')
    a('s_and_b32 s7, s2, 511')
    a('s_lshl_b32 s7, s7, 18')
    a(f's_add_u32 s{S_KV}, s66, s7')
    a(f's_addc_u32 s{S_KV+1}, s67, 0')
    a(f's_mov_b32 s{S_KV+2}, 262144')
    a(f's_mov_b32 s{S_KV+3}, 0x00020000')
    a('s_mul_i32 s7, s3, 20971520')
    a('s_mul_i32 s34, s5, 1310720')
    a('s_add_u32 s7, s7, s34')
    a('s_lshl_b32 s34, s6, 8')
    a('s_add_u32 s7, s7, s34')
    a(f's_add_u32 s{S_O}, s{P+20}, s7')
    a(f's_addc_u32 s{S_O+1}, s{P+21}, 0')
    a(f's_sub_u32 s{S_O+2}, 1310720, s34')
    a(f's_mov_b32 s{S_O+3}, 0x00020000')
    a(f's_lshl_b32 s{S_M0B}, s4, 12')
    a(f's_add_u32 s{S_M0B}, s{S_M0B}, s35')
    a(f's_lshl_b32 s{S_WQB}, s4, 17')
    a(f's_and_b32 s{S_KVB}, s4, 1')
    a(f's_lshl_b32 s{S_KVB}, s{S_KVB}, 12')
    a(f's_lshr_b32 s{S_ROT}, s2, 5')
    a(f's_xor_b32 s{S_ROT}, s{S_ROT}, s2')
    a(f's_and_b32 s{S_ROT}, s{S_ROT}, 31')
    a(f's_lshl_b32 s{S_ROT}, s{S_ROT}, 13')
    a(f's_add_u32 s{S_ROT}, s{S_ROT}, s{S_KVB}')
    a('s_cmp_lt_u32 s4, 2')
    a('s_cselect_b32 s7, 8192, 0')
    a(f's_add_u32 s{S_ROT}, s{S_ROT}, s7')
    a(f's_mov_b32 s{S_C}, {f32hex(SCALE_LOG2E)}')
    a(f's_mov_b32 s{S_THR}, {f32hex(THR_RAW)}')
    a('v_lshrrev_b32 v16, 4, v0')
    a('v_and_b32 v17, 15, v0')
    a('v_lshlrev_b32 v18, 1, v16')
    a('v_xor_b32 v18, v17, v18')
    a('v_lshlrev_b32 v18, 4, v18')
    a(f'v_lshl_add_u32 v{V_DMAW}, v16, 13, v18')
    a('v_lshl_add_u32 v19, v16, 8, v18')
    a('v_xor_b32 v20, v17, v16')
    a('s_cmp_lt_u32 s4, 2')
    a('s_cselect_b64 vcc, -1, 0')
    for i in range(4):
        a(f'v_xor_b32 v21, {4*i}, v20')
        a('v_lshlrev_b32 v21, 4, v21')
        a('v_lshl_add_u32 v21, v16, 8, v21')
        a(f'v_cndmask_b32 v{V_DMA+i}, v19, v21, vcc')
    a('v_and_b32 v16, 31, v0')
    a('v_lshrrev_b32 v17, 5, v0')
    a('v_lshlrev_b32 v18, 6, v17')
    a(f'v_lshl_add_u32 v{V_XOFF}, v16, 10, v18')
    a(f's_lshl_b32 s7, s4, 15')
    a(f'v_add_u32 v{V_XOFF}, s7, v{V_XOFF}')
    a('v_and_b32 v18, 15, v16')
    a('v_lshlrev_b32 v19, 3, v17')
    a('v_xor_b32 v18, v18, v19')
    a('v_lshlrev_b32 v18, 4, v18')
    a(f'v_lshl_add_u32 v{V_KADDR}, v16, 8, v18')
    a(f'v_add_u32 v{V_KADDR}, s35, v{V_KADDR}')
    a('v_bfe_u32 v18, v0, 2, 2')
    a('v_and_b32 v19, 3, v0')
    a('v_bfe_u32 v20, v0, 4, 1')
    a('v_and_b32 v21, 1, v19')
    a('v_lshlrev_b32 v21, 7, v21')
    a('v_lshl_add_u32 v21, v20, 4, v21')
    a('v_lshrrev_b32 v22, 1, v19')
    a('v_lshl_add_u32 v21, v22, 3, v21')
    a('v_lshl_add_u32 v21, v18, 8, v21')
    a('v_lshl_add_u32 v21, v17, 13, v21')
    a('v_add_u32 v21, s35, v21')
    a('v_add_u32 v21, 32768, v21')
    for mt in range(4):
        a(f'v_xor_b32 v22, {mt}, v18')
        a(f'v_lshl_add_u32 v{V_TR+mt}, v22, 5, v21')
    a('v_mul_u32_u24 v0, 7168, v17')
    a('v_add_u32 v0, 32768, v0')
    for i in range(64):
        a(f'v_mov_b32 v{V_ACC+i}, 0')

    CL = ('K', 'V', 'N')
    Q = {c: [] for c in CL}
    def dma_raw(slot, mode, imm):
        inst = a.lbl; a.lbl += 1
        a(f's_add_u32 m0, s{S_M0B}, {slot*SLOTB}')
        if mode == 'wq':
            a(f's_add_u32 s{S_SOFF}, s{S_WQB}, {imm*524288}')
            for i in range(4):
                a(f'buffer_load_dwordx4 v{V_DMAW}, s[{S_WQ}:{S_WQ+3}], s{S_SOFF} offen offset:{1024*i} lds')
                if i < 3:
                    a(f's_add_u32 s{S_SOFF}, s{S_SOFF}, 31744')
        else:
            a(f's_add_u32 s{S_SOFF}, s{S_ROT}, {(imm*8192) & 0x3ffff}')
            a(f's_and_b32 s{S_SOFF}, s{S_SOFF}, 0x3ffff')
            for i in range(4):
                a(f'buffer_load_dwordx4 v{V_DMA+i}, s[{S_KV}:{S_KV+3}], s{S_SOFF} offen offset:{1024*i}{KVF} lds')
    def DMA(tag, slot, mode, imm, classes=('K', 'V')):
        if 'nodma' in EXP: return
        lab = a.newlabel('nodma')
        a(f's_cmp_gt_u32 s{S_W}, {3 if "V" in classes else 1}')
        a(f's_cbranch_scc1 {lab}')
        dma_raw(slot, mode, imm)
        a.label(lab)
        for c in classes: Q[c].extend([tag] * 4)
    def XL(stage):
        base = V_X + 16 * (stage % 3)
        for u in range(4):
            a(f'buffer_load_dwordx4 v[{base+4*u}:{base+4*u+3}], v{V_XOFF}, s[{S_X}:{S_X+3}], 0 offen offset:{128*stage+16*u}')
        for c in CL: Q[c].extend([('X', stage)] * 4)
    def WAIT(tags):
        ns = {}
        for c in CL:
            q = Q[c]; last = -1
            for i, t in enumerate(q):
                if t in tags: last = i
            ns[c] = min(len(q) - 1 - last, 63)
            del q[:last + 1]
        if len(set(ns.values())) == 1:
            a(f's_waitcnt vmcnt({ns["K"]})'); return
        lV = a.newlabel('wv'); lN = a.newlabel('wn'); lj = a.newlabel('wj')
        a(f's_cmp_gt_u32 s{S_W}, 3'); a(f's_cbranch_scc1 {lN}')
        a(f's_cmp_gt_u32 s{S_W}, 1'); a(f's_cbranch_scc1 {lV}')
        a(f's_waitcnt vmcnt({ns["K"]})'); a(f's_branch {lj}')
        a.label(lV); a(f's_waitcnt vmcnt({ns["V"]})'); a(f's_branch {lj}')
        a.label(lN); a(f's_waitcnt vmcnt({ns["N"]})')
        a.label(lj)
    DMA(('W', 0), 2, 'wq', 0); XL(0); DMA(('W', 1), 3, 'wq', 1); XL(1)
    DMA(('S', 0), 0, 'kv', 0); DMA(('S', 1), 1, 'kv', 1)
    XL(2)
    for s in range(8):
        a.comment(f'==== Q stage {s}')
        WAIT([('W', s), ('X', s)])
        a('s_barrier')
        if s + 2 < 8:
            DMA(('W', s + 2), 2 + (s + 2) % 3, 'wq', s + 2)
        elif s == 6:
            DMA(('K0',), 4, 'kv', -1, classes=('K',))
        elif s == 7:
            DMA(('S', 2), 2, 'kv', 2)
        slot = s % 3
        xb = V_X + 16 * (s % 3)
        uses = [(u, mt) for u in range(4) for mt in range(4)]
        def rd(i):
            u, mt = uses[i]; fb = V_FR + 4 * (i % NFR)
            for part in range(2):
                a(f'ds_read_b64_tr_b16 v[{fb+2*part}:{fb+2*part+1}], v{V_TR+mt} offset:{slot*SLOTB + (8*u+4*part)*256}')
        for i in range(NFR - 1): rd(i)
        for i in range(16):
            nxt = i + NFR - 1
            if nxt < 16: rd(nxt)
            outstanding = min(nxt, 15) - i
            a(f's_waitcnt lgkmcnt({2*outstanding})')
            u, mt = uses[i]; fb = V_FR + 4 * (i % NFR)
            a(f'v_mfma_f32_32x32x16_bf16 v[{V_ACC+16*mt}:{V_ACC+16*mt+15}], v[{fb}:{fb+3}], v[{xb+4*u}:{xb+4*u+3}], v[{V_ACC+16*mt}:{V_ACC+16*mt+15}]')
        if s + 3 < 8:
            XL(s + 3)
    a('s_nop 15')
    for p in range(32):
        a(f'v_cvt_pk_bf16_f32 v{V_Q+p}, v{V_ACC+2*p}, v{V_ACC+2*p+1}')
    for i in range(64):
        a(f'v_mov_b32 v{V_ACC+i}, 0')
    for mt in range(4):
        a(f'v_sub_u32 v{V_TR+mt}, v{V_TR+mt}, v0')
    a(f'v_mov_b32 v{V_M}, 0xf149f2ca')
    a(f'v_mov_b32 v{V_MC}, 0xf149f2ca')
    a(f'v_mov_b32 v{V_L}, 0')
    WAIT([('K0',)])
    a('s_barrier')
    DMA(('S', 3), 3, 'kv', 3)
    def kread(i, sb, fslot):
        fb = V_FR + 4 * (fslot % NFR)
        if i == 0:
            a(f'ds_read_b128 v[{fb}:{fb+3}], v{V_KADDR} offset:{sb}')
        else:
            a(f'v_xor_b32 v{V_T2}, {16*i}, v{V_KADDR}')
            a(f'ds_read_b128 v[{fb}:{fb+3}], v{V_T2} offset:{sb}')
    def maxops(S):
        ops = []
        ops.append(f'v_max3_f32 v{V_T0}, v{S}, v{S+1}, v{S+2}')
        ops.append(f'v_max3_f32 v{V_T1}, v{S+3}, v{S+4}, v{S+5}')
        ops.append(f'v_max3_f32 v{V_T0}, v{V_T0}, v{S+6}, v{S+7}')
        ops.append(f'v_max3_f32 v{V_T1}, v{V_T1}, v{S+8}, v{S+9}')
        ops.append(f'v_max3_f32 v{V_T0}, v{V_T0}, v{S+10}, v{S+11}')
        ops.append(f'v_max3_f32 v{V_T1}, v{V_T1}, v{S+12}, v{S+13}')
        ops.append(f'v_max3_f32 v{V_T0}, v{V_T0}, v{S+14}, v{S+15}')
        ops.append(f'v_max_f32 v{V_T0}, v{V_T0}, v{V_T1}')
        ops.append(f'v_subrev_f32 v{V_T1}, s{S_THR}, v{V_T0}')
        ops.append(f'v_cmp_gt_f32 vcc, v{V_T1}, v{V_M}')
        return ops
    a(f'v_add_u32 v{V_T1}, 0x10000, v{V_KADDR}')
    S0 = V_S
    for half in range(2):
        for j in range(4):
            ks = 4 * half + j
            a(f'v_xor_b32 v{V_T2}, {16*ks}, v{V_T1}')
            a(f'ds_read_b128 v[{V_FR+4*j}:{V_FR+4*j+3}], v{V_T2}')
        for j in range(4):
            ks = 4 * half + j
            a(f's_waitcnt lgkmcnt({3-j})')
            c = '0' if ks == 0 else f'v[{S0}:{S0+15}]'
            a(f'v_mfma_f32_32x32x16_bf16 v[{S0}:{S0+15}], v[{V_FR+4*j}:{V_FR+4*j+3}], v[{V_Q+4*ks}:{V_Q+4*ks+3}], {c}')
    a('s_nop 15')
    for op in maxops(S0): a(op)

    def att_iter(slot, par, last=False):
        sb = slot * SLOTB
        S = V_S + 16 * par
        Sn = V_S + 16 * (par ^ 1)
        nk = 0 if last else 8
        uses = [('K', i) for i in range(nk)] + [('V', i) for i in range(8)]
        def rd(i):
            kind, n = uses[i]; fb = V_FR + 4 * (i % NFR)
            if kind == 'K':
                if n == 0:
                    return [f'ds_read_b128 v[{fb}:{fb+3}], v{V_KADDR} offset:{sb}'], 1
                return [f'v_xor_b32 v{V_T2}, {16*n}, v{V_KADDR}', f'ds_read_b128 v[{fb}:{fb+3}], v{V_T2} offset:{sb}'], 1
            ks, mt = n // 4, n % 4
            return [f'ds_read_b64_tr_b16 v[{fb+2*part}:{fb+2*part+1}], v{V_TR+mt} offset:{sb + 8192 + (16*ks+8*part)*256}' for part in range(2)], 2
        cnt = [rd(i)[1] for i in range(len(uses))]
        for i in range(NFR - 1):
            for op in rd(i)[0]: a(op)
        lab = a.newlabel('norescale')
        a(f's_cbranch_vccz {lab}')
        a(f'v_mov_b32 v{V_T1}, v{V_T0}')
        a('s_nop 1')
        a(f'v_permlane32_swap_b32 v{V_T0}, v{V_T1}')
        a(f'v_max3_f32 v{V_T0}, v{V_T0}, v{V_T1}, v{V_M}')
        a(f'v_sub_f32 v{V_T1}, v{V_M}, v{V_T0}')
        a(f'v_mul_f32 v{V_T1}, s{S_C}, v{V_T1}')
        a(f'v_exp_f32 v{V_T1}, v{V_T1}')
        a(f'v_mov_b32 v{V_M}, v{V_T0}')
        a(f'v_mul_f32 v{V_MC}, s{S_C}, v{V_T0}')
        a(f'v_mul_f32 v{V_L}, v{V_L}, v{V_T1}')
        for i in range(64):
            a(f'v_mul_f32 v{V_ACC+i}, v{V_ACC+i}, v{V_T1}')
        a.label(lab)
        fa = []
        for i in range(16):
            fa.append(f'v_fma_f32 v{S+i}, v{S+i}, s{S_C}, -v{V_MC}')
            if i >= 2: fa.append(f'v_exp_f32 v{S+i-2}, v{S+i-2}')
        fa.append(f'v_exp_f32 v{S+14}, v{S+14}'); fa.append(f'v_exp_f32 v{S+15}, v{S+15}')
        fa.append(f'v_add_f32 v{V_T0}, v{S}, v{S+1}')
        fa.append(f'v_add_f32 v{V_T1}, v{S+2}, v{S+3}')
        for i in range(4, 16, 2):
            tt = V_T0 if (i // 2) % 2 == 0 else V_T1
            fa.append(f'v_add_f32 v{tt}, v{tt}, v{S+i}')
            fa.append(f'v_add_f32 v{tt}, v{tt}, v{S+i+1}')
        for p in range(8):
            fa.append(f'v_cvt_pk_bf16_f32 v{S+p}, v{S+2*p}, v{S+2*p+1}')
        fa.append(f'v_add_f32 v{V_T0}, v{V_T0}, v{V_T1}')
        fa.append(f'v_add_f32 v{V_L}, v{V_L}, v{V_T0}')
        fb_ops = [] if last else maxops(Sn)
        nA = nk
        perA = (len(fa) + max(nA, 1) - 1) // max(nA, 1)
        fi = 0
        if nA:
            for _ in range(perA):
                a(fa[fi]); fi += 1
        else:
            for op in fa: a(op)
            fi = len(fa)
        issued = NFR - 1
        for i, (kind, n) in enumerate(uses):
            if issued < len(uses):
                for op in rd(issued)[0]: a(op)
                issued += 1
            out = sum(cnt[i+1:issued])
            a(f's_waitcnt lgkmcnt({out})')
            fb = V_FR + 4 * (i % NFR)
            if kind == 'K':
                c = '0' if n == 0 else f'v[{Sn}:{Sn+15}]'
                a(f'v_mfma_f32_32x32x16_bf16 v[{Sn}:{Sn+15}], v[{fb}:{fb+3}], v[{V_Q+4*n}:{V_Q+4*n+3}], {c}')
                lim = len(fa) if n == 7 else min(len(fa), fi + perA)
                while fi < lim:
                    a(fa[fi]); fi += 1
                if n == 7:
                    a('s_nop 1')
            else:
                ks, mt = n // 4, n % 4
                a(f'v_mfma_f32_32x32x16_bf16 v[{V_ACC+16*mt}:{V_ACC+16*mt+15}], v[{fb}:{fb+3}], v[{S+4*ks}:{S+4*ks+3}], v[{V_ACC+16*mt}:{V_ACC+16*mt+15}]')
                if n >= 3 and fb_ops:
                    for _ in range(3):
                        if fb_ops: a(fb_ops.pop(0))
        assert not fb_ops

    def dma_loop(slot):
        if 'nodma' in EXP: return
        lab = a.newlabel('nodma')
        a(f's_cmp_gt_u32 s{S_W}, 3')
        a(f's_cbranch_scc1 {lab}')
        a(f's_add_u32 m0, s{S_M0B}, {slot*SLOTB}')
        a('s_nop 0')
        for i in range(4):
            a(f'buffer_load_dwordx4 v{V_DMA+i}, s[{S_KV}:{S_KV+3}], s{S_T} offen offset:{1024*i}{KVF} lds')
        a.label(lab)
    a('s_waitcnt vmcnt(12)')
    a('s_barrier')
    att_iter(0, 0)
    a(f's_add_u32 s{S_T}, s{S_ROT}, {4*8192}')
    a(f's_and_b32 s{S_T}, s{S_T}, 0x3ffff')
    a(f's_mov_b32 s{S_CNT}, 0')
    a.label('att_loop')
    for k in range(4):
        t = 1 + k
        a('s_waitcnt vmcnt(8)')
        a('s_barrier')
        dma_loop((t + 3) % 4)
        a(f's_add_u32 s{S_T}, s{S_T}, 8192')
        a(f's_and_b32 s{S_T}, s{S_T}, 0x3ffff')
        att_iter(t % 4, t % 2)
    a(f's_add_u32 s{S_CNT}, s{S_CNT}, 1')
    a(f's_cmp_lt_u32 s{S_CNT}, 7')
    a('s_cbranch_scc1 att_loop')
    for t in range(29, 32):
        a.comment(f'==== att iter {t} (tail)')
        a(f's_waitcnt vmcnt({4*(31-t)})')
        a('s_barrier')
        att_iter(t % 4, t % 2, last=(t == 31))
    a('s_nop 15')
    a(f'v_mov_b32 v{V_T1}, v{V_L}')
    a('v_mbcnt_lo_u32_b32 v0, -1, 0')
    a('v_mbcnt_hi_u32_b32 v0, -1, v0')
    a(f'v_permlane32_swap_b32 v{V_L}, v{V_T1}')
    a(f'v_add_f32 v{V_L}, v{V_L}, v{V_T1}')
    a(f'v_rcp_f32 v{V_L}, v{V_L}')
    a('v_and_b32 v16, 31, v0')
    a('v_lshrrev_b32 v17, 5, v0')
    a('v_lshlrev_b32 v18, 7, v17')
    a('v_lshl_add_u32 v18, v16, 13, v18')
    a('s_lshl_b32 s7, s4, 18')
    a('v_add_u32 v18, s7, v18')
    for i in range(64):
        a(f'v_mul_f32 v{V_ACC+i}, v{V_ACC+i}, v{V_L}')
    for p in range(32):
        a(f'v_cvt_pk_bf16_f32 v{V_ACC+p}, v{V_ACC+2*p}, v{V_ACC+2*p+1}')
    for n in range(8):
        a(f'buffer_store_dwordx4 v[{V_ACC+4*n}:{V_ACC+4*n+3}], v18, s[{S_O}:{S_O+3}], 0 offen offset:{16*n}')
    if 'timing' in EXP:
        a('s_memtime s[84:85]')
        a('s_memrealtime s[86:87]')
        a('s_waitcnt lgkmcnt(0)')
        a('s_sub_u32 s84, s84, s80')
        a('s_sub_u32 s86, s86, s82')
        a('s_mov_b32 s90, 256')
        a('s_mov_b32 s91, 0x00020000')
        a('s_and_b32 s92, s2, 31')
        a('s_lshl_b32 s92, s92, 3')
        a('v_mov_b32 v0, s92')
        a('v_mov_b32 v2, s84')
        a('v_mov_b32 v3, s86')
        a('s_cmp_lt_u32 s2, 32')
        a('s_cbranch_scc0 attn_end')
        a('buffer_store_dwordx2 v[2:3], v0, s[88:91], 0 offen')
    a.label('attn_end')
    a('s_endpgm')
    return NV

def gen_oproj(a):
    V_DMAW = 1
    V_AOFF = 2
    V_TR = 3
    V_OOFF = 5
    V_FR = 8
    V_B = 40
    V_ACC = 104
    NV = 136
    S_W = 4
    S_A = 8; S_WO = 12; S_OUT = 16
    S_M0B = 20; S_SOFF = 21; S_WB = 22; S_CNT = 23; S_KOFF = 24; S_AOFF = 25
    a.label('oproj_kernel')
    a('s_cmp_ge_u32 s2, 256')
    a('s_cbranch_scc1 oproj_end')
    a('s_load_dwordx2 s[40:41], s[0:1], 32')
    a('s_load_dwordx2 s[42:43], s[0:1], 72')
    a('s_load_dwordx2 s[44:45], s[0:1], 80')
    a('s_load_dwordx2 s[46:47], s[0:1], 96')
    a('v_lshrrev_b32 v1, 6, v0')
    a('v_and_b32 v0, 63, v0')
    a('s_lshr_b32 s3, s2, 7')
    a('v_readfirstlane_b32 s4, v1')
    a('s_lshr_b32 s5, s2, 3')
    a('s_and_b32 s5, s5, 15')
    a('s_and_b32 s6, s2, 7')
    a('s_waitcnt lgkmcnt(0)')
    a('s_cmp_eq_u32 s3, 0')
    a('s_cselect_b64 s[40:41], s[40:41], s[42:43]')
    a('s_mul_i32 s7, s3, 20971520')
    a('s_mul_i32 s34, s5, 1310720')
    a('s_add_u32 s7, s7, s34')
    a(f's_add_u32 s{S_A}, s46, s7')
    a(f's_addc_u32 s{S_A+1}, s47, 0')
    a(f's_mov_b32 s{S_A+2}, 1310720')
    a(f's_mov_b32 s{S_A+3}, 0x00020000')
    a('s_lshl_b32 s7, s6, 7')
    a(f's_add_u32 s{S_WO}, s40, s7')
    a(f's_addc_u32 s{S_WO+1}, s41, 0')
    a(f's_sub_u32 s{S_WO+2}, 4194304, s7')
    a(f's_mov_b32 s{S_WO+3}, 0x00020000')
    a('s_mul_i32 s34, s5, 327680')
    a('s_lshl_b32 s35, s3, 10')
    a('s_add_u32 s35, s35, s7')
    a('s_add_u32 s34, s34, s35')
    a(f's_add_u32 s{S_OUT}, s44, s34')
    a(f's_addc_u32 s{S_OUT+1}, s45, 0')
    a(f's_sub_u32 s{S_OUT+2}, 327680, s35')
    a(f's_mov_b32 s{S_OUT+3}, 0x00020000')
    a(f's_lshl_b32 s{S_M0B}, s4, 11')
    a(f's_lshl_b32 s{S_WB}, s4, 14')
    a('v_lshrrev_b32 v16, 3, v0')
    a('v_and_b32 v17, 7, v0')
    a('v_bfe_u32 v18, v16, 1, 1')
    a('v_lshlrev_b32 v18, 1, v18')
    a('v_xor_b32 v18, v17, v18')
    a('v_lshlrev_b32 v18, 4, v18')
    a(f'v_lshl_add_u32 v{V_DMAW}, v16, 10, v18')
    a('v_and_b32 v16, 31, v0')
    a('v_lshrrev_b32 v17, 5, v0')
    a('v_lshlrev_b32 v18, 6, v17')
    a(f'v_lshl_add_u32 v{V_AOFF}, v16, 13, v18')
    a(f'v_lshl_add_u32 v{V_OOFF}, v16, 11, v18')
    a('s_lshl_b32 s7, s4, 18')
    a(f'v_add_u32 v{V_AOFF}, s7, v{V_AOFF}')
    a('s_lshl_b32 s7, s4, 16')
    a(f'v_add_u32 v{V_OOFF}, s7, v{V_OOFF}')
    a('v_bfe_u32 v18, v0, 2, 2')
    a('v_and_b32 v19, 3, v0')
    a('v_bfe_u32 v20, v0, 4, 1')
    a('v_and_b32 v21, 1, v19')
    a('v_lshlrev_b32 v21, 6, v21')
    a('v_lshl_add_u32 v21, v20, 4, v21')
    a('v_lshrrev_b32 v22, 1, v19')
    a('v_lshl_add_u32 v21, v22, 3, v21')
    a('v_lshl_add_u32 v21, v18, 7, v21')
    a('v_lshl_add_u32 v21, v17, 12, v21')
    a('v_lshrrev_b32 v18, 1, v18')
    for mt in range(2):
        a(f'v_xor_b32 v22, {mt}, v18')
        a(f'v_lshl_add_u32 v{V_TR+mt}, v22, 5, v21')
    for i in range(32):
        a(f'v_mov_b32 v{V_ACC+i}, 0')
    SL = 8192
    def issue(slot):
        lab = a.newlabel('nodma')
        a(f's_cmp_gt_u32 s{S_W}, 3')
        a(f's_cbranch_scc1 {lab}')
        a(f's_add_u32 m0, s{S_M0B}, {slot*SL}')
        a(f's_add_u32 s{S_SOFF}, s{S_WB}, s{S_KOFF}')
        a(f'buffer_load_dwordx4 v{V_DMAW}, s[{S_WO}:{S_WO+3}], s{S_SOFF} offen lds')
        a(f's_add_u32 s{S_SOFF}, s{S_SOFF}, 7168')
        a(f'buffer_load_dwordx4 v{V_DMAW}, s[{S_WO}:{S_WO+3}], s{S_SOFF} offen offset:1024 lds')
        a.label(lab)
        for u in range(4):
            a(f'buffer_load_dwordx4 v[{V_B+16*slot+4*u}:{V_B+16*slot+4*u+3}], v{V_AOFF}, s[{S_A}:{S_A+3}], s{S_AOFF} offen offset:{16*u}')
        a(f's_add_u32 s{S_KOFF}, s{S_KOFF}, 65536')
        a(f's_add_u32 s{S_AOFF}, s{S_AOFF}, 128')
    def wait2(nl, nn):
        if nl == nn:
            a(f's_waitcnt vmcnt({nl})'); return
        l1 = a.newlabel('w4'); l2 = a.newlabel('wj')
        a(f's_cmp_gt_u32 s{S_W}, 3')
        a(f's_cbranch_scc1 {l1}')
        a(f's_waitcnt vmcnt({nl})')
        a(f's_branch {l2}')
        a.label(l1)
        a(f's_waitcnt vmcnt({nn})')
        a.label(l2)
    def stage(slot):
        def rd(u):
            fb = V_FR + 8 * (u % 4)
            for mt in range(2):
                for part in range(2):
                    a(f'ds_read_b64_tr_b16 v[{fb+4*mt+2*part}:{fb+4*mt+2*part+1}], v{V_TR+mt} offset:{slot*SL + (8*u+4*part)*128}')
        for u in range(4):
            rd(u)
        for u in range(4):
            a(f's_waitcnt lgkmcnt({4*(3-u)})')
            fb = V_FR + 8 * u
            for mt in range(2):
                a(f'v_mfma_f32_32x32x16_bf16 v[{V_ACC+16*mt}:{V_ACC+16*mt+15}], v[{fb+4*mt}:{fb+4*mt+3}], v[{V_B+16*slot+4*u}:{V_B+16*slot+4*u+3}], v[{V_ACC+16*mt}:{V_ACC+16*mt+15}]')
    a(f's_mov_b32 s{S_KOFF}, 0')
    a(f's_mov_b32 s{S_AOFF}, 0')
    for s in range(3):
        issue(s)
    a(f's_mov_b32 s{S_CNT}, 0')
    a.label('op_loop')
    for sl in range(4):
        wait2(12, 8)
        a('s_barrier')
        issue((sl + 3) % 4)
        stage(sl)
    a(f's_add_u32 s{S_CNT}, s{S_CNT}, 1')
    a(f's_cmp_lt_u32 s{S_CNT}, 15')
    a('s_cbranch_scc1 op_loop')
    for t in range(60, 64):
        rem = min(t + 2, 63) - t
        wait2(6 * rem, 4 * rem)
        a('s_barrier')
        if t + 3 < 64:
            issue((t + 3) % 4)
        stage(t % 4)
    a('s_nop 15')
    for p in range(16):
        a(f'v_cvt_pk_bf16_f32 v{V_ACC+p}, v{V_ACC+2*p}, v{V_ACC+2*p+1}')
    for n in range(4):
        a(f'buffer_store_dwordx4 v[{V_ACC+4*n}:{V_ACC+4*n+3}], v{V_OOFF}, s[{S_OUT}:{S_OUT+3}], 0 offen offset:{16*n}')
    a.label('oproj_end')
    a('s_endpgm')
    return NV

def kd(name, nv):
    return f""".section .rodata,"a"
.p2align 6
.amdhsa_kernel {name}
  .amdhsa_next_free_vgpr {nv}
  .amdhsa_next_free_sgpr 96
  .amdhsa_accum_offset {(nv+3)//4*4}
  .amdhsa_group_segment_fixed_size 0
  .amdhsa_kernarg_size 104
  .amdhsa_user_sgpr_count 2
  .amdhsa_user_sgpr_kernarg_segment_ptr 1
  .amdhsa_system_sgpr_workgroup_id_x 1
.end_amdhsa_kernel
"""

def main():
    out = HEADER
    out += '; @launch kernel=attn_kernel grid=(512,1,1) block=(640,1,1) lds=163840\n'
    out += '; @launch kernel=oproj_kernel grid=(256,1,1) block=(320,1,1) lds=32768\n'
    out += '.amdgcn_target "amdgcn-amd-amdhsa--gfx950"\n.text\n'
    a = Asm()
    nv1 = gen_attn(a)
    out += '.globl attn_kernel\n.p2align 8\n.type attn_kernel,@function\n' + a.text()
    a = Asm(); a.lbl = 10000
    nv2 = gen_oproj(a)
    out += '.globl oproj_kernel\n.p2align 8\n.type oproj_kernel,@function\n' + a.text()
    out += kd('attn_kernel', nv1) + kd('oproj_kernel', nv2)
    open(sys.argv[1] if len(sys.argv) > 1 else 'concat_heads__mha_block_cached__gqa_block_cached__near_ridge.s', 'w').write(out)

main()
```

```python
import sys, os
EXP = os.environ.get('EXP','')

HEADER = open('concat_heads__mha_block_cached__gqa_block_cached__near_ridge.s.ref').read().split('; Override launch')[0]

class Asm:
    def __init__(self):
        self.lines = []
        self.lbl = 0
    def __call__(self, s):
        if 'nolds' in EXP and s.startswith('ds_read'): return
        if 'nobar' in EXP and s.startswith('s_barrier'): return
        if 'nomfma' in EXP and s.startswith('v_mfma'): return
        self.lines.append('    ' + s)
    def label(self, name):
        self.lines.append(name + ':')
    def newlabel(self, p='L'):
        self.lbl += 1
        return f'{p}_{self.lbl}'
    def comment(self, s):
        self.lines.append('    ; ' + s)
    def text(self):
        return '\n'.join(self.lines) + '\n'

def vr(base, n=1):
    return f'v{base}' if n == 1 else f'v[{base}:{base+n-1}]'
def sr(base, n=1):
    return f's{base}' if n == 1 else f's[{base}:{base+n-1}]'

NSLOT = 4
SLOTB = 16384
SCALE_LOG2E = (128 ** -0.5) * 1.4426950408889634
THR_RAW = 8.0 / SCALE_LOG2E

import struct
def f32hex(x):
    return '0x%08x' % struct.unpack('<I', struct.pack('<f', x))[0]

KVF = ' nt'
for f in ('sc0','sc1','nt'):
    if 'kv'+f in EXP: KVF += ' '+f
def gen_attn(a):
    V_DMA = 1
    V_TR = 5
    V_KADDR = 9
    V_M = 10
    V_L = 11
    V_MC = 12
    V_T0 = 13
    V_T1 = 14
    V_T2 = 15
    V_DMAW = 13
    V_XOFF = 14
    V_FR = 16
    NFR = 6
    V_S = 40
    V_Q = 72
    V_X = 40
    V_ACC = 104
    NV = 168
    S_W = 4; S_X = 8; S_WQ = 12; S_KV = 16; S_O = 20
    S_M0B = 24; S_SOFF = 25; S_T = 26; S_CNT = 27; S_C = 28; S_THR = 29; S_WQB = 30; S_KVB = 31; S_ROT = 33
    P = 40
    a.label('attn_kernel')
    a('s_cmp_ge_u32 s2, 512')
    a('s_cbranch_scc1 attn_end')
    a(f's_load_dwordx16 s[{P}:{P+15}], s[0:1], 0')
    a(f's_load_dwordx4 s[{P+16}:{P+19}], s[0:1], 64')
    a(f's_load_dwordx2 s[{P+20}:{P+21}], s[0:1], 96')
    if 'timing' in EXP:
        a('s_memtime s[80:81]')
        a('s_memrealtime s[82:83]')
        a('s_load_dwordx2 s[88:89], s[0:1], 88')
    a('v_lshrrev_b32 v1, 6, v0')
    a('v_and_b32 v0, 63, v0')
    a('s_nop 0')
    a('v_readfirstlane_b32 s4, v1')
    a('s_nop 3')
    a('s_lshl_b32 s2, s2, 1')
    a('s_cmp_ge_u32 s4, 5')
    a('s_cselect_b32 s35, 1, 0')
    a('s_add_u32 s2, s2, s35')
    a('s_mul_i32 s7, s35, 5')
    a('s_sub_u32 s4, s4, s7')
    a('s_mul_i32 s35, s35, 81920')
    a('s_lshr_b32 s3, s2, 9')
    a('s_lshr_b32 s5, s2, 5')
    a('s_and_b32 s5, s5, 15')
    a('s_and_b32 s6, s2, 31')
    a('s_waitcnt lgkmcnt(0)')
    a('s_cmp_eq_u32 s3, 0')
    a(f's_cselect_b64 s[64:65], s[{P}:{P+1}], s[{P+10}:{P+11}]')
    a(f's_cselect_b64 s[66:67], s[{P+2}:{P+3}], s[{P+12}:{P+13}]')
    a(f's_cselect_b64 s[68:69], s[{P+4}:{P+5}], s[{P+14}:{P+15}]')
    a(f's_cselect_b64 s[70:71], s[{P+6}:{P+7}], s[{P+16}:{P+17}]')
    a('s_cmp_lt_u32 s4, 2')
    a('s_cselect_b64 s[66:67], s[66:67], s[68:69]')
    a('s_mul_i32 s7, s5, 163840')
    a(f's_add_u32 s{S_X}, s64, s7')
    a(f's_addc_u32 s{S_X+1}, s65, 0')
    a(f's_mov_b32 s{S_X+2}, 163840')
    a(f's_mov_b32 s{S_X+3}, 0x00020000')
    a('s_lshl_b32 s7, s6, 8')
    a(f's_add_u32 s{S_WQ}, s70, s7')
    a(f's_addc_u32 s{S_WQ+1}, s71, 0')
    a(f's_sub_u32 s{S_WQ+2}, 4194304, s7')
    a(f's_mov_b32 s{S_WQ+3}, 0x00020000')
    a('s_and_b32 s7, s2, 511')
    a('s_lshl_b32 s7, s7, 18')
    a(f's_add_u32 s{S_KV}, s66, s7')
    a(f's_addc_u32 s{S_KV+1}, s67, 0')
    a(f's_mov_b32 s{S_KV+2}, 262144')
    a(f's_mov_b32 s{S_KV+3}, 0x00020000')
    a('s_mul_i32 s7, s3, 20971520')
    a('s_mul_i32 s34, s5, 1310720')
    a('s_add_u32 s7, s7, s34')
    a('s_lshl_b32 s34, s6, 8')
    a('s_add_u32 s7, s7, s34')
    a(f's_add_u32 s{S_O}, s{P+20}, s7')
    a(f's_addc_u32 s{S_O+1}, s{P+21}, 0')
    a(f's_sub_u32 s{S_O+2}, 1310720, s34')
    a(f's_mov_b32 s{S_O+3}, 0x00020000')
    a(f's_lshl_b32 s{S_M0B}, s4, 12')
    a(f's_add_u32 s{S_M0B}, s{S_M0B}, s35')
    a(f's_lshl_b32 s{S_WQB}, s4, 17')
    a(f's_and_b32 s{S_KVB}, s4, 1')
    a(f's_lshl_b32 s{S_KVB}, s{S_KVB}, 12')
    a(f's_lshr_b32 s{S_ROT}, s2, 5')
    a(f's_xor_b32 s{S_ROT}, s{S_ROT}, s2')
    a(f's_and_b32 s{S_ROT}, s{S_ROT}, 31')
    a(f's_lshl_b32 s{S_ROT}, s{S_ROT}, 13')
    a(f's_add_u32 s{S_ROT}, s{S_ROT}, s{S_KVB}')
    a('s_cmp_lt_u32 s4, 2')
    a('s_cselect_b32 s7, 8192, 0')
    a(f's_add_u32 s{S_ROT}, s{S_ROT}, s7')
    a(f's_mov_b32 s{S_C}, {f32hex(SCALE_LOG2E)}')
    a(f's_mov_b32 s{S_THR}, {f32hex(THR_RAW)}')
    a('v_lshrrev_b32 v16, 4, v0')
    a('v_and_b32 v17, 15, v0')
    a('v_lshlrev_b32 v18, 1, v16')
    a('v_xor_b32 v18, v17, v18')
    a('v_lshlrev_b32 v18, 4, v18')
    a(f'v_lshl_add_u32 v{V_DMAW}, v16, 13, v18')
    a('v_lshl_add_u32 v19, v16, 8, v18')
    a('v_xor_b32 v20, v17, v16')
    a('s_cmp_lt_u32 s4, 2')
    a('s_cselect_b64 vcc, -1, 0')
    for i in range(4):
        a(f'v_xor_b32 v21, {4*i}, v20')
        a('v_lshlrev_b32 v21, 4, v21')
        a('v_lshl_add_u32 v21, v16, 8, v21')
        a(f'v_cndmask_b32 v{V_DMA+i}, v19, v21, vcc')
    a('v_and_b32 v16, 31, v0')
    a('v_lshrrev_b32 v17, 5, v0')
    a('v_lshlrev_b32 v18, 6, v17')
    a(f'v_lshl_add_u32 v{V_XOFF}, v16, 10, v18')
    a(f's_lshl_b32 s7, s4, 15')
    a(f'v_add_u32 v{V_XOFF}, s7, v{V_XOFF}')
    a('v_and_b32 v18, 15, v16')
    a('v_lshlrev_b32 v19, 3, v17')
    a('v_xor_b32 v18, v18, v19')
    a('v_lshlrev_b32 v18, 4, v18')
    a(f'v_lshl_add_u32 v{V_KADDR}, v16, 8, v18')
    a(f'v_add_u32 v{V_KADDR}, s35, v{V_KADDR}')
    a('v_bfe_u32 v18, v0, 2, 2')
    a('v_and_b32 v19, 3, v0')
    a('v_bfe_u32 v20, v0, 4, 1')
    a('v_and_b32 v21, 1, v19')
    a('v_lshlrev_b32 v21, 7, v21')
    a('v_lshl_add_u32 v21, v20, 4, v21')
    a('v_lshrrev_b32 v22, 1, v19')
    a('v_lshl_add_u32 v21, v22, 3, v21')
    a('v_lshl_add_u32 v21, v18, 8, v21')
    a('v_lshl_add_u32 v21, v17, 13, v21')
    a('v_add_u32 v21, s35, v21')
    a('v_add_u32 v21, 32768, v21')
    for mt in range(4):
        a(f'v_xor_b32 v22, {mt}, v18')
        a(f'v_lshl_add_u32 v{V_TR+mt}, v22, 5, v21')
    a('v_mul_u32_u24 v0, 7168, v17')
    a('v_add_u32 v0, 32768, v0')
    for i in range(64):
        a(f'v_mov_b32 v{V_ACC+i}, 0')

    CL = ('K', 'V', 'N')
    Q = {c: [] for c in CL}
    def dma_raw(slot, mode, imm):
        inst = a.lbl; a.lbl += 1
        a(f's_add_u32 m0, s{S_M0B}, {slot*SLOTB}')
        if mode == 'wq':
            a(f's_add_u32 s{S_SOFF}, s{S_WQB}, {imm*524288}')
            for i in range(4):
                a(f'buffer_load_dwordx4 v{V_DMAW}, s[{S_WQ}:{S_WQ+3}], s{S_SOFF} offen offset:{1024*i} lds')
                if i < 3:
                    a(f's_add_u32 s{S_SOFF}, s{S_SOFF}, 31744')
        else:
            a(f's_add_u32 s{S_SOFF}, s{S_ROT}, {(imm*8192) & 0x3ffff}')
            a(f's_and_b32 s{S_SOFF}, s{S_SOFF}, 0x3ffff')
            for i in range(4):
                a(f'buffer_load_dwordx4 v{V_DMA+i}, s[{S_KV}:{S_KV+3}], s{S_SOFF} offen offset:{1024*i}{KVF} lds')
    def DMA(tag, slot, mode, imm, classes=('K', 'V')):
        if 'nodma' in EXP: return
        lab = a.newlabel('nodma')
        a(f's_cmp_gt_u32 s{S_W}, {3 if "V" in classes else 1}')
        a(f's_cbranch_scc1 {lab}')
        dma_raw(slot, mode, imm)
        a.label(lab)
        for c in classes: Q[c].extend([tag] * 4)
    def XL(stage):
        base = V_X + 16 * (stage % 3)
        for u in range(4):
            a(f'buffer_load_dwordx4 v[{base+4*u}:{base+4*u+3}], v{V_XOFF}, s[{S_X}:{S_X+3}], 0 offen offset:{128*stage+16*u}')
        for c in CL: Q[c].extend([('X', stage)] * 4)
    def WAIT(tags):
        ns = {}
        for c in CL:
            q = Q[c]; last = -1
            for i, t in enumerate(q):
                if t in tags: last = i
            ns[c] = min(len(q) - 1 - last, 63)
            del q[:last + 1]
        if len(set(ns.values())) == 1:
            a(f's_waitcnt vmcnt({ns["K"]})'); return
        lV = a.newlabel('wv'); lN = a.newlabel('wn'); lj = a.newlabel('wj')
        a(f's_cmp_gt_u32 s{S_W}, 3'); a(f's_cbranch_scc1 {lN}')
        a(f's_cmp_gt_u32 s{S_W}, 1'); a(f's_cbranch_scc1 {lV}')
        a(f's_waitcnt vmcnt({ns["K"]})'); a(f's_branch {lj}')
        a.label(lV); a(f's_waitcnt vmcnt({ns["V"]})'); a(f's_branch {lj}')
        a.label(lN); a(f's_waitcnt vmcnt({ns["N"]})')
        a.label(lj)
    DMA(('W', 0), 2, 'wq', 0); XL(0); DMA(('W', 1), 3, 'wq', 1); XL(1)
    DMA(('S', 0), 0, 'kv', 0); DMA(('S', 1), 1, 'kv', 1)
    XL(2)
    for s in range(8):
        a.comment(f'==== Q stage {s}')
        WAIT([('W', s), ('X', s)])
        a('s_barrier')
        if s + 2 < 8:
            DMA(('W', s + 2), 2 + (s + 2) % 3, 'wq', s + 2)
        elif s == 6:
            DMA(('K0',), 4, 'kv', -1, classes=('K',))
        elif s == 7:
            DMA(('S', 2), 2, 'kv', 2)
        slot = s % 3
        xb = V_X + 16 * (s % 3)
        uses = [(u, mt) for u in range(4) for mt in range(4)]
        def rd(i):
            u, mt = uses[i]; fb = V_FR + 4 * (i % NFR)
            for part in range(2):
                a(f'ds_read_b64_tr_b16 v[{fb+2*part}:{fb+2*part+1}], v{V_TR+mt} offset:{slot*SLOTB + (8*u+4*part)*256}')
        for i in range(NFR - 1): rd(i)
        for i in range(16):
            nxt = i + NFR - 1
            if nxt < 16: rd(nxt)
            outstanding = min(nxt, 15) - i
            a(f's_waitcnt lgkmcnt({2*outstanding})')
            u, mt = uses[i]; fb = V_FR + 4 * (i % NFR)
            a(f'v_mfma_f32_32x32x16_bf16 v[{V_ACC+16*mt}:{V_ACC+16*mt+15}], v[{fb}:{fb+3}], v[{xb+4*u}:{xb+4*u+3}], v[{V_ACC+16*mt}:{V_ACC+16*mt+15}]')
        if s + 3 < 8:
            XL(s + 3)
    a('s_nop 15')
    for p in range(32):
        a(f'v_cvt_pk_bf16_f32 v{V_Q+p}, v{V_ACC+2*p}, v{V_ACC+2*p+1}')
    for i in range(64):
        a(f'v_mov_b32 v{V_ACC+i}, 0')
    for mt in range(4):
        a(f'v_sub_u32 v{V_TR+mt}, v{V_TR+mt}, v0')
    a(f'v_mov_b32 v{V_M}, 0xf149f2ca')
    a(f'v_mov_b32 v{V_MC}, 0xf149f2ca')
    a(f'v_mov_b32 v{V_L}, 0')
    WAIT([('K0',)])
    a('s_barrier')
    DMA(('S', 3), 3, 'kv', 3)
    def kread(i, sb, fslot):
        fb = V_FR + 4 * (fslot % NFR)
        if i == 0:
            a(f'ds_read_b128 v[{fb}:{fb+3}], v{V_KADDR} offset:{sb}')
        else:
            a(f'v_xor_b32 v{V_T2}, {16*i}, v{V_KADDR}')
            a(f'ds_read_b128 v[{fb}:{fb+3}], v{V_T2} offset:{sb}')
    def maxops(S):
        ops = []
        ops.append(f'v_max3_f32 v{V_T0}, v{S}, v{S+1}, v{S+2}')
        ops.append(f'v_max3_f32 v{V_T1}, v{S+3}, v{S+4}, v{S+5}')
        ops.append(f'v_max3_f32 v{V_T0}, v{V_T0}, v{S+6}, v{S+7}')
        ops.append(f'v_max3_f32 v{V_T1}, v{V_T1}, v{S+8}, v{S+9}')
        ops.append(f'v_max3_f32 v{V_T0}, v{V_T0}, v{S+10}, v{S+11}')
        ops.append(f'v_max3_f32 v{V_T1}, v{V_T1}, v{S+12}, v{S+13}')
        ops.append(f'v_max3_f32 v{V_T0}, v{V_T0}, v{S+14}, v{S+15}')
        ops.append(f'v_max_f32 v{V_T0}, v{V_T0}, v{V_T1}')
        ops.append(f'v_subrev_f32 v{V_T1}, s{S_THR}, v{V_T0}')
        ops.append(f'v_cmp_gt_f32 vcc, v{V_T1}, v{V_M}')
        return ops
    a(f'v_add_u32 v{V_T1}, 0x10000, v{V_KADDR}')
    S0 = V_S
    for half in range(2):
        for j in range(4):
            ks = 4 * half + j
            a(f'v_xor_b32 v{V_T2}, {16*ks}, v{V_T1}')
            a(f'ds_read_b128 v[{V_FR+4*j}:{V_FR+4*j+3}], v{V_T2}')
        for j in range(4):
            ks = 4 * half + j
            a(f's_waitcnt lgkmcnt({3-j})')
            c = '0' if ks == 0 else f'v[{S0}:{S0+15}]'
            a(f'v_mfma_f32_32x32x16_bf16 v[{S0}:{S0+15}], v[{V_FR+4*j}:{V_FR+4*j+3}], v[{V_Q+4*ks}:{V_Q+4*ks+3}], {c}')
    a('s_nop 15')
    for op in maxops(S0): a(op)

    def att_iter(slot, par, last=False):
        sb = slot * SLOTB
        S = V_S + 16 * par
        Sn = V_S + 16 * (par ^ 1)
        nk = 0 if last else 8
        uses = [('K', i) for i in range(nk)] + [('V', i) for i in range(8)]
        def rd(i):
            kind, n = uses[i]; fb = V_FR + 4 * (i % NFR)
            if kind == 'K':
                if n == 0:
                    return [f'ds_read_b128 v[{fb}:{fb+3}], v{V_KADDR} offset:{sb}'], 1
                return [f'v_xor_b32 v{V_T2}, {16*n}, v{V_KADDR}', f'ds_read_b128 v[{fb}:{fb+3}], v{V_T2} offset:{sb}'], 1
            ks, mt = n // 4, n % 4
            return [f'ds_read_b64_tr_b16 v[{fb+2*part}:{fb+2*part+1}], v{V_TR+mt} offset:{sb + 8192 + (16*ks+8*part)*256}' for part in range(2)], 2
        cnt = [rd(i)[1] for i in range(len(uses))]
        for i in range(NFR - 1):
            for op in rd(i)[0]: a(op)
        lab = a.newlabel('norescale')
        a(f's_cbranch_vccz {lab}')
        a(f'v_mov_b32 v{V_T1}, v{V_T0}')
        a('s_nop 1')
        a(f'v_permlane32_swap_b32 v{V_T0}, v{V_T1}')
        a(f'v_max3_f32 v{V_T0}, v{V_T0}, v{V_T1}, v{V_M}')
        a(f'v_sub_f32 v{V_T1}, v{V_M}, v{V_T0}')
        a(f'v_mul_f32 v{V_T1}, s{S_C}, v{V_T1}')
        a(f'v_exp_f32 v{V_T1}, v{V_T1}')
        a(f'v_mov_b32 v{V_M}, v{V_T0}')
        a(f'v_mul_f32 v{V_MC}, s{S_C}, v{V_T0}')
        a(f'v_mul_f32 v{V_L}, v{V_L}, v{V_T1}')
        for i in range(64):
            a(f'v_mul_f32 v{V_ACC+i}, v{V_ACC+i}, v{V_T1}')
        a.label(lab)
        fa = []
        for i in range(16):
            fa.append(f'v_fma_f32 v{S+i}, v{S+i}, s{S_C}, -v{V_MC}')
            if i >= 2: fa.append(f'v_exp_f32 v{S+i-2}, v{S+i-2}')
        fa.append(f'v_exp_f32 v{S+14}, v{S+14}'); fa.append(f'v_exp_f32 v{S+15}, v{S+15}')
        fa.append(f'v_add_f32 v{V_T0}, v{S}, v{S+1}')
        fa.append(f'v_add_f32 v{V_T1}, v{S+2}, v{S+3}')
        for i in range(4, 16, 2):
            tt = V_T0 if (i // 2) % 2 == 0 else V_T1
            fa.append(f'v_add_f32 v{tt}, v{tt}, v{S+i}')
            fa.append(f'v_add_f32 v{tt}, v{tt}, v{S+i+1}')
        for p in range(8):
            fa.append(f'v_cvt_pk_bf16_f32 v{S+p}, v{S+2*p}, v{S+2*p+1}')
        fa.append(f'v_add_f32 v{V_T0}, v{V_T0}, v{V_T1}')
        fa.append(f'v_add_f32 v{V_L}, v{V_L}, v{V_T0}')
        fb_ops = [] if last else maxops(Sn)
        nA = nk
        perA = (len(fa) + max(nA, 1) - 1) // max(nA, 1)
        fi = 0
        if nA:
            for _ in range(perA):
                a(fa[fi]); fi += 1
        else:
            for op in fa: a(op)
            fi = len(fa)
        issued = NFR - 1
        for i, (kind, n) in enumerate(uses):
            if issued < len(uses):
                for op in rd(issued)[0]: a(op)
                issued += 1
            out = sum(cnt[i+1:issued])
            a(f's_waitcnt lgkmcnt({out})')
            fb = V_FR + 4 * (i % NFR)
            if kind == 'K':
                c = '0' if n == 0 else f'v[{Sn}:{Sn+15}]'
                a(f'v_mfma_f32_32x32x16_bf16 v[{Sn}:{Sn+15}], v[{fb}:{fb+3}], v[{V_Q+4*n}:{V_Q+4*n+3}], {c}')
                lim = len(fa) if n == 7 else min(len(fa), fi + perA)
                while fi < lim:
                    a(fa[fi]); fi += 1
                if n == 7:
                    a('s_nop 1')
            else:
                ks, mt = n // 4, n % 4
                a(f'v_mfma_f32_32x32x16_bf16 v[{V_ACC+16*mt}:{V_ACC+16*mt+15}], v[{fb}:{fb+3}], v[{S+4*ks}:{S+4*ks+3}], v[{V_ACC+16*mt}:{V_ACC+16*mt+15}]')
                if n >= 3 and fb_ops:
                    for _ in range(3):
                        if fb_ops: a(fb_ops.pop(0))
        assert not fb_ops

    def dma_loop(slot):
        if 'nodma' in EXP: return
        lab = a.newlabel('nodma')
        a(f's_cmp_gt_u32 s{S_W}, 3')
        a(f's_cbranch_scc1 {lab}')
        a(f's_add_u32 m0, s{S_M0B}, {slot*SLOTB}')
        a('s_nop 0')
        for i in range(4):
            a(f'buffer_load_dwordx4 v{V_DMA+i}, s[{S_KV}:{S_KV+3}], s{S_T} offen offset:{1024*i}{KVF} lds')
        a.label(lab)
    a('s_waitcnt vmcnt(12)')
    a('s_barrier')
    att_iter(0, 0)
    a(f's_add_u32 s{S_T}, s{S_ROT}, {4*8192}')
    a(f's_and_b32 s{S_T}, s{S_T}, 0x3ffff')
    a(f's_mov_b32 s{S_CNT}, 0')
    a.label('att_loop')
    for k in range(4):
        t = 1 + k
        a('s_waitcnt vmcnt(8)')
        a('s_barrier')
        dma_loop((t + 3) % 4)
        a(f's_add_u32 s{S_T}, s{S_T}, 8192')
        a(f's_and_b32 s{S_T}, s{S_T}, 0x3ffff')
        att_iter(t % 4, t % 2)
    a(f's_add_u32 s{S_CNT}, s{S_CNT}, 1')
    a(f's_cmp_lt_u32 s{S_CNT}, 7')
    a('s_cbranch_scc1 att_loop')
    for t in range(29, 32):
        a.comment(f'==== att iter {t} (tail)')
        a(f's_waitcnt vmcnt({4*(31-t)})')
        a('s_barrier')
        att_iter(t % 4, t % 2, last=(t == 31))
    a('s_nop 15')
    a(f'v_mov_b32 v{V_T1}, v{V_L}')
    a('v_mbcnt_lo_u32_b32 v0, -1, 0')
    a('v_mbcnt_hi_u32_b32 v0, -1, v0')
    a(f'v_permlane32_swap_b32 v{V_L}, v{V_T1}')
    a(f'v_add_f32 v{V_L}, v{V_L}, v{V_T1}')
    a(f'v_rcp_f32 v{V_L}, v{V_L}')
    a('v_and_b32 v16, 31, v0')
    a('v_lshrrev_b32 v17, 5, v0')
    a('v_lshlrev_b32 v18, 7, v17')
    a('v_lshl_add_u32 v18, v16, 13, v18')
    a('s_lshl_b32 s7, s4, 18')
    a('v_add_u32 v18, s7, v18')
    for i in range(64):
        a(f'v_mul_f32 v{V_ACC+i}, v{V_ACC+i}, v{V_L}')
    for p in range(32):
        a(f'v_cvt_pk_bf16_f32 v{V_ACC+p}, v{V_ACC+2*p}, v{V_ACC+2*p+1}')
    for n in range(8):
        a(f'buffer_store_dwordx4 v[{V_ACC+4*n}:{V_ACC+4*n+3}], v18, s[{S_O}:{S_O+3}], 0 offen offset:{16*n}')
    if 'timing' in EXP:
        a('s_memtime s[84:85]')
        a('s_memrealtime s[86:87]')
        a('s_waitcnt lgkmcnt(0)')
        a('s_sub_u32 s84, s84, s80')
        a('s_sub_u32 s86, s86, s82')
        a('s_mov_b32 s90, 256')
        a('s_mov_b32 s91, 0x00020000')
        a('s_and_b32 s92, s2, 31')
        a('s_lshl_b32 s92, s92, 3')
        a('v_mov_b32 v0, s92')
        a('v_mov_b32 v2, s84')
        a('v_mov_b32 v3, s86')
        a('s_cmp_lt_u32 s2, 32')
        a('s_cbranch_scc0 attn_end')
        a('buffer_store_dwordx2 v[2:3], v0, s[88:91], 0 offen')
    a.label('attn_end')
    a('s_endpgm')
    return NV

def gen_oproj(a):
    R = 6
    NSTG = 32
    V_DMAW = 1
    V_AOFF = 2
    V_TR = 3
    V_OOFF = 5
    V_RED = 6
    V_FR = 8
    V_B = 40
    V_ACC = 136
    NV = 168
    S_W = 4
    S_A = 8; S_WO = 12; S_OUT = 16
    S_M0B = 20; S_SOFF = 21; S_WB = 22; S_G = 23
    SL = 8192
    a.label('oproj_kernel')
    a('s_cmp_ge_u32 s2, 256')
    a('s_cbranch_scc1 oproj_end')
    a('s_load_dwordx2 s[40:41], s[0:1], 32')
    a('s_load_dwordx2 s[42:43], s[0:1], 72')
    a('s_load_dwordx2 s[44:45], s[0:1], 80')
    a('s_load_dwordx2 s[46:47], s[0:1], 96')
    a('v_lshrrev_b32 v1, 6, v0')
    a('v_and_b32 v0, 63, v0')
    a('s_lshr_b32 s3, s2, 7')
    a('v_readfirstlane_b32 s4, v1')
    a('s_lshr_b32 s5, s2, 3')
    a('s_and_b32 s5, s5, 15')
    a('s_and_b32 s6, s2, 7')
    a('s_cmp_ge_u32 s4, 5')
    a(f's_cselect_b32 s{S_G}, 1, 0')
    a(f's_mul_i32 s7, s{S_G}, 5')
    a('s_sub_u32 s4, s4, s7')
    a('s_waitcnt lgkmcnt(0)')
    a('s_cmp_eq_u32 s3, 0')
    a('s_cselect_b64 s[40:41], s[40:41], s[42:43]')
    a('s_mul_i32 s7, s3, 20971520')
    a('s_mul_i32 s34, s5, 1310720')
    a('s_add_u32 s7, s7, s34')
    a(f's_lshl_b32 s36, s{S_G}, 12')
    a('s_add_u32 s7, s7, s36')
    a(f's_add_u32 s{S_A}, s46, s7')
    a(f's_addc_u32 s{S_A+1}, s47, 0')
    a(f's_sub_u32 s{S_A+2}, 1310720, s36')
    a(f's_mov_b32 s{S_A+3}, 0x00020000')
    a('s_lshl_b32 s7, s6, 7')
    a(f's_lshl_b32 s36, s{S_G}, 21')
    a('s_add_u32 s36, s36, s7')
    a(f's_add_u32 s{S_WO}, s40, s36')
    a(f's_addc_u32 s{S_WO+1}, s41, 0')
    a(f's_sub_u32 s{S_WO+2}, 4194304, s36')
    a(f's_mov_b32 s{S_WO+3}, 0x00020000')
    a('s_mul_i32 s34, s5, 327680')
    a('s_lshl_b32 s35, s3, 10')
    a('s_add_u32 s35, s35, s7')
    a('s_add_u32 s34, s34, s35')
    a(f's_add_u32 s{S_OUT}, s44, s34')
    a(f's_addc_u32 s{S_OUT+1}, s45, 0')
    a(f's_sub_u32 s{S_OUT+2}, 327680, s35')
    a(f's_mov_b32 s{S_OUT+3}, 0x00020000')
    a(f's_mul_i32 s37, s{S_G}, {R*SL}')
    a(f's_lshl_b32 s{S_M0B}, s4, 11')
    a(f's_add_u32 s{S_M0B}, s{S_M0B}, s37')
    a(f's_lshl_b32 s{S_WB}, s4, 14')
    a('v_lshrrev_b32 v16, 3, v0')
    a('v_and_b32 v17, 7, v0')
    a('v_bfe_u32 v18, v16, 1, 1')
    a('v_lshlrev_b32 v18, 1, v18')
    a('v_xor_b32 v18, v17, v18')
    a('v_lshlrev_b32 v18, 4, v18')
    a(f'v_lshl_add_u32 v{V_DMAW}, v16, 10, v18')
    a('v_and_b32 v16, 31, v0')
    a('v_lshrrev_b32 v17, 5, v0')
    a('v_lshlrev_b32 v18, 6, v17')
    a(f'v_lshl_add_u32 v{V_AOFF}, v16, 13, v18')
    a(f'v_lshl_add_u32 v{V_OOFF}, v16, 11, v18')
    a('s_lshl_b32 s7, s4, 18')
    a(f'v_add_u32 v{V_AOFF}, s7, v{V_AOFF}')
    a('s_lshl_b32 s7, s4, 16')
    a(f'v_add_u32 v{V_OOFF}, s7, v{V_OOFF}')
    a('s_lshl_b32 s7, s4, 13')
    a(f'v_lshlrev_b32 v{V_RED}, 4, v0')
    a(f'v_add_u32 v{V_RED}, s7, v{V_RED}')
    a('v_bfe_u32 v18, v0, 2, 2')
    a('v_and_b32 v19, 3, v0')
    a('v_bfe_u32 v20, v0, 4, 1')
    a('v_and_b32 v21, 1, v19')
    a('v_lshlrev_b32 v21, 6, v21')
    a('v_lshl_add_u32 v21, v20, 4, v21')
    a('v_lshrrev_b32 v22, 1, v19')
    a('v_lshl_add_u32 v21, v22, 3, v21')
    a('v_lshl_add_u32 v21, v18, 7, v21')
    a('v_lshl_add_u32 v21, v17, 12, v21')
    a('v_add_u32 v21, s37, v21')
    a('v_lshrrev_b32 v18, 1, v18')
    for mt in range(2):
        a(f'v_xor_b32 v22, {mt}, v18')
        a(f'v_lshl_add_u32 v{V_TR+mt}, v22, 5, v21')
    for i in range(32):
        a(f'v_mov_b32 v{V_ACC+i}, 0')
    QL = []; QN = []
    def issue(st):
        slot = st % R
        lab = a.newlabel('nodma')
        a(f's_cmp_gt_u32 s{S_W}, 3')
        a(f's_cbranch_scc1 {lab}')
        a(f's_add_u32 m0, s{S_M0B}, {slot*SL}')
        a(f's_add_u32 s{S_SOFF}, s{S_WB}, {st*65536}')
        a(f'buffer_load_dwordx4 v{V_DMAW}, s[{S_WO}:{S_WO+3}], s{S_SOFF} offen lds')
        a(f's_add_u32 s{S_SOFF}, s{S_SOFF}, 7168')
        a(f'buffer_load_dwordx4 v{V_DMAW}, s[{S_WO}:{S_WO+3}], s{S_SOFF} offen offset:1024 lds')
        a.label(lab)
        for u in range(4):
            a(f'buffer_load_dwordx4 v[{V_B+16*slot+4*u}:{V_B+16*slot+4*u+3}], v{V_AOFF}, s[{S_A}:{S_A+3}], 0 offen offset:{128*st+16*u}')
        QL.extend([st] * 6); QN.extend([st] * 4)
    def WAIT(st):
        ns = []
        for q in (QL, QN):
            last = max(i for i, t in enumerate(q) if t == st)
            ns.append(len(q) - 1 - last); del q[:last + 1]
        if ns[0] == ns[1]:
            a(f's_waitcnt vmcnt({ns[0]})'); return
        l1 = a.newlabel('w4'); l2 = a.newlabel('wj')
        a(f's_cmp_gt_u32 s{S_W}, 3')
        a(f's_cbranch_scc1 {l1}')
        a(f's_waitcnt vmcnt({ns[0]})')
        a(f's_branch {l2}')
        a.label(l1)
        a(f's_waitcnt vmcnt({ns[1]})')
        a.label(l2)
    for st in range(R - 1):
        issue(st)
    for st in range(NSTG):
        slot = st % R
        WAIT(st)
        a('s_barrier')
        if st + R - 1 < NSTG:
            issue(st + R - 1)
        for u in range(4):
            fb = V_FR + 8 * u
            for mt in range(2):
                for part in range(2):
                    a(f'ds_read_b64_tr_b16 v[{fb+4*mt+2*part}:{fb+4*mt+2*part+1}], v{V_TR+mt} offset:{slot*SL + (8*u+4*part)*128}')
        for u in range(4):
            a(f's_waitcnt lgkmcnt({4*(3-u)})')
            fb = V_FR + 8 * u
            for mt in range(2):
                a(f'v_mfma_f32_32x32x16_bf16 v[{V_ACC+16*mt}:{V_ACC+16*mt+15}], v[{fb+4*mt}:{fb+4*mt+3}], v[{V_B+16*slot+4*u}:{V_B+16*slot+4*u+3}], v[{V_ACC+16*mt}:{V_ACC+16*mt+15}]')
    a('s_nop 15')
    a('s_barrier')
    a(f's_cmp_eq_u32 s{S_G}, 0')
    a('s_cbranch_scc1 op_g0')
    for n in range(8):
        a(f'ds_write_b128 v{V_RED}, v[{V_ACC+4*n}:{V_ACC+4*n+3}] offset:{1024*n}')
    a('s_waitcnt lgkmcnt(0)')
    a('s_barrier')
    a('s_endpgm')
    a.label('op_g0')
    a('s_barrier')
    for n in range(8):
        a(f'ds_read_b128 v[{V_B+4*n}:{V_B+4*n+3}], v{V_RED} offset:{1024*n}')
    a('s_waitcnt lgkmcnt(0)')
    for i in range(32):
        a(f'v_add_f32 v{V_ACC+i}, v{V_ACC+i}, v{V_B+i}')
    for p in range(16):
        a(f'v_cvt_pk_bf16_f32 v{V_ACC+p}, v{V_ACC+2*p}, v{V_ACC+2*p+1}')
    for n in range(4):
        a(f'buffer_store_dwordx4 v[{V_ACC+4*n}:{V_ACC+4*n+3}], v{V_OOFF}, s[{S_OUT}:{S_OUT+3}], 0 offen offset:{16*n}')
    a.label('oproj_end')
    a('s_endpgm')
    return NV

def kd(name, nv):
    return f""".section .rodata,"a"
.p2align 6
.amdhsa_kernel {name}
  .amdhsa_next_free_vgpr {nv}
  .amdhsa_next_free_sgpr 96
  .amdhsa_accum_offset {(nv+3)//4*4}
  .amdhsa_group_segment_fixed_size 0
  .amdhsa_kernarg_size 104
  .amdhsa_user_sgpr_count 2
  .amdhsa_user_sgpr_kernarg_segment_ptr 1
  .amdhsa_system_sgpr_workgroup_id_x 1
.end_amdhsa_kernel
"""

def main():
    out = HEADER
    out += '; @launch kernel=attn_kernel grid=(512,1,1) block=(640,1,1) lds=163840\n'
    out += '; @launch kernel=oproj_kernel grid=(256,1,1) block=(640,1,1) lds=98304\n'
    out += '.amdgcn_target "amdgcn-amd-amdhsa--gfx950"\n.text\n'
    a = Asm()
    nv1 = gen_attn(a)
    out += '.globl attn_kernel\n.p2align 8\n.type attn_kernel,@function\n' + a.text()
    a = Asm(); a.lbl = 10000
    nv2 = gen_oproj(a)
    out += '.globl oproj_kernel\n.p2align 8\n.type oproj_kernel,@function\n' + a.text()
    out += kd('attn_kernel', nv1) + kd('oproj_kernel', nv2)
    open(sys.argv[1] if len(sys.argv) > 1 else 'concat_heads__mha_block_cached__gqa_block_cached__near_ridge.s', 'w').write(out)

main()
```

```python
import sys, os
EXP = os.environ.get('EXP','')

HEADER = open('concat_heads__mha_block_cached__gqa_block_cached__near_ridge.s.ref').read().split('; Override launch')[0]

class Asm:
    def __init__(self):
        self.lines = []
        self.lbl = 0
    def __call__(self, s):
        if 'nolds' in EXP and s.startswith('ds_read'): return
        if 'nobar' in EXP and s.startswith('s_barrier'): return
        if 'nomfma' in EXP and s.startswith('v_mfma'): return
        self.lines.append('    ' + s)
    def label(self, name):
        self.lines.append(name + ':')
    def newlabel(self, p='L'):
        self.lbl += 1
        return f'{p}_{self.lbl}'
    def comment(self, s):
        self.lines.append('    ; ' + s)
    def text(self):
        return '\n'.join(self.lines) + '\n'

def vr(base, n=1):
    return f'v{base}' if n == 1 else f'v[{base}:{base+n-1}]'
def sr(base, n=1):
    return f's{base}' if n == 1 else f's[{base}:{base+n-1}]'

NSLOT = 4
SLOTB = 16384
SCALE_LOG2E = (128 ** -0.5) * 1.4426950408889634
THR_RAW = 8.0 / SCALE_LOG2E

import struct
def f32hex(x):
    return '0x%08x' % struct.unpack('<I', struct.pack('<f', x))[0]

KVF = ' nt'
for f in ('sc0','sc1','nt'):
    if 'kv'+f in EXP: KVF += ' '+f
def gen_attn(a):
    V_DMA = 1
    V_TR = 5
    V_KADDR = 9
    V_M = 10
    V_L = 11
    V_MC = 12
    V_T0 = 13
    V_T1 = 14
    V_T2 = 15
    V_DMAW = 13
    V_XOFF = 14
    V_FR = 16
    NFR = 6
    V_S = 40
    V_Q = 72
    V_X = 40
    V_ACC = 104
    NV = 168
    S_W = 4; S_X = 8; S_WQ = 12; S_KV = 16; S_O = 20
    S_M0B = 24; S_SOFF = 25; S_T = 26; S_CNT = 27; S_C = 28; S_THR = 29; S_WQB = 30; S_KVB = 31; S_ROT = 33
    P = 40
    a.label('attn_kernel')
    a('s_cmp_ge_u32 s2, 512')
    a('s_cbranch_scc1 attn_end')
    a(f's_load_dwordx16 s[{P}:{P+15}], s[0:1], 0')
    a(f's_load_dwordx4 s[{P+16}:{P+19}], s[0:1], 64')
    a(f's_load_dwordx2 s[{P+20}:{P+21}], s[0:1], 96')
    if 'timing' in EXP:
        a('s_memtime s[80:81]')
        a('s_memrealtime s[82:83]')
        a('s_load_dwordx2 s[88:89], s[0:1], 88')
    a('v_lshrrev_b32 v1, 6, v0')
    a('v_and_b32 v0, 63, v0')
    a('s_nop 0')
    a('v_readfirstlane_b32 s4, v1')
    a('s_nop 3')
    a('s_lshl_b32 s2, s2, 1')
    a('s_cmp_ge_u32 s4, 5')
    a('s_cselect_b32 s35, 1, 0')
    a('s_add_u32 s2, s2, s35')
    a('s_mul_i32 s7, s35, 5')
    a('s_sub_u32 s4, s4, s7')
    a('s_mul_i32 s35, s35, 81920')
    a('s_lshr_b32 s3, s2, 9')
    a('s_lshr_b32 s5, s2, 5')
    a('s_and_b32 s5, s5, 15')
    a('s_and_b32 s6, s2, 31')
    a('s_waitcnt lgkmcnt(0)')
    a('s_cmp_eq_u32 s3, 0')
    a(f's_cselect_b64 s[64:65], s[{P}:{P+1}], s[{P+10}:{P+11}]')
    a(f's_cselect_b64 s[66:67], s[{P+2}:{P+3}], s[{P+12}:{P+13}]')
    a(f's_cselect_b64 s[68:69], s[{P+4}:{P+5}], s[{P+14}:{P+15}]')
    a(f's_cselect_b64 s[70:71], s[{P+6}:{P+7}], s[{P+16}:{P+17}]')
    a('s_cmp_lt_u32 s4, 2')
    a('s_cselect_b64 s[66:67], s[66:67], s[68:69]')
    a('s_mul_i32 s7, s5, 163840')
    a(f's_add_u32 s{S_X}, s64, s7')
    a(f's_addc_u32 s{S_X+1}, s65, 0')
    a(f's_mov_b32 s{S_X+2}, 163840')
    a(f's_mov_b32 s{S_X+3}, 0x00020000')
    a('s_lshl_b32 s7, s6, 8')
    a(f's_add_u32 s{S_WQ}, s70, s7')
    a(f's_addc_u32 s{S_WQ+1}, s71, 0')
    a(f's_sub_u32 s{S_WQ+2}, 4194304, s7')
    a(f's_mov_b32 s{S_WQ+3}, 0x00020000')
    a('s_and_b32 s7, s2, 511')
    a('s_lshl_b32 s7, s7, 18')
    a(f's_add_u32 s{S_KV}, s66, s7')
    a(f's_addc_u32 s{S_KV+1}, s67, 0')
    a(f's_mov_b32 s{S_KV+2}, 262144')
    a(f's_mov_b32 s{S_KV+3}, 0x00020000')
    a('s_mul_i32 s7, s3, 20971520')
    a('s_mul_i32 s34, s5, 1310720')
    a('s_add_u32 s7, s7, s34')
    a('s_lshl_b32 s34, s6, 13')
    a('s_add_u32 s7, s7, s34')
    a(f's_add_u32 s{S_O}, s{P+20}, s7')
    a(f's_addc_u32 s{S_O+1}, s{P+21}, 0')
    a(f's_sub_u32 s{S_O+2}, 1310720, s34')
    a(f's_mov_b32 s{S_O+3}, 0x00020000')
    a(f's_lshl_b32 s{S_M0B}, s4, 12')
    a(f's_add_u32 s{S_M0B}, s{S_M0B}, s35')
    a(f's_lshl_b32 s{S_WQB}, s4, 17')
    a(f's_and_b32 s{S_KVB}, s4, 1')
    a(f's_lshl_b32 s{S_KVB}, s{S_KVB}, 12')
    a(f's_lshr_b32 s{S_ROT}, s2, 5')
    a(f's_xor_b32 s{S_ROT}, s{S_ROT}, s2')
    a(f's_and_b32 s{S_ROT}, s{S_ROT}, 31')
    a(f's_lshl_b32 s{S_ROT}, s{S_ROT}, 13')
    a(f's_add_u32 s{S_ROT}, s{S_ROT}, s{S_KVB}')
    a('s_cmp_lt_u32 s4, 2')
    a('s_cselect_b32 s7, 8192, 0')
    a(f's_add_u32 s{S_ROT}, s{S_ROT}, s7')
    a(f's_mov_b32 s{S_C}, {f32hex(SCALE_LOG2E)}')
    a(f's_mov_b32 s{S_THR}, {f32hex(THR_RAW)}')
    a('v_lshrrev_b32 v16, 4, v0')
    a('v_and_b32 v17, 15, v0')
    a('v_lshlrev_b32 v18, 1, v16')
    a('v_xor_b32 v18, v17, v18')
    a('v_lshlrev_b32 v18, 4, v18')
    a(f'v_lshl_add_u32 v{V_DMAW}, v16, 13, v18')
    a('v_lshl_add_u32 v19, v16, 8, v18')
    a('v_xor_b32 v20, v17, v16')
    a('s_cmp_lt_u32 s4, 2')
    a('s_cselect_b64 vcc, -1, 0')
    for i in range(4):
        a(f'v_xor_b32 v21, {4*i}, v20')
        a('v_lshlrev_b32 v21, 4, v21')
        a('v_lshl_add_u32 v21, v16, 8, v21')
        a(f'v_cndmask_b32 v{V_DMA+i}, v19, v21, vcc')
    a('v_and_b32 v16, 31, v0')
    a('v_lshrrev_b32 v17, 5, v0')
    a('v_lshlrev_b32 v18, 6, v17')
    a(f'v_lshl_add_u32 v{V_XOFF}, v16, 10, v18')
    a(f's_lshl_b32 s7, s4, 15')
    a(f'v_add_u32 v{V_XOFF}, s7, v{V_XOFF}')
    a('v_and_b32 v18, 15, v16')
    a('v_lshlrev_b32 v19, 3, v17')
    a('v_xor_b32 v18, v18, v19')
    a('v_lshlrev_b32 v18, 4, v18')
    a(f'v_lshl_add_u32 v{V_KADDR}, v16, 8, v18')
    a(f'v_add_u32 v{V_KADDR}, s35, v{V_KADDR}')
    a('v_bfe_u32 v18, v0, 2, 2')
    a('v_and_b32 v19, 3, v0')
    a('v_bfe_u32 v20, v0, 4, 1')
    a('v_and_b32 v21, 1, v19')
    a('v_lshlrev_b32 v21, 7, v21')
    a('v_lshl_add_u32 v21, v20, 4, v21')
    a('v_lshrrev_b32 v22, 1, v19')
    a('v_lshl_add_u32 v21, v22, 3, v21')
    a('v_lshl_add_u32 v21, v18, 8, v21')
    a('v_lshl_add_u32 v21, v17, 13, v21')
    a('v_add_u32 v21, s35, v21')
    a('v_add_u32 v21, 32768, v21')
    for mt in range(4):
        a(f'v_xor_b32 v22, {mt}, v18')
        a(f'v_lshl_add_u32 v{V_TR+mt}, v22, 5, v21')
    a('v_mul_u32_u24 v0, 7168, v17')
    a('v_add_u32 v0, 32768, v0')
    for i in range(64):
        a(f'v_mov_b32 v{V_ACC+i}, 0')

    CL = ('K', 'V', 'N')
    Q = {c: [] for c in CL}
    def dma_raw(slot, mode, imm):
        inst = a.lbl; a.lbl += 1
        a(f's_add_u32 m0, s{S_M0B}, {slot*SLOTB}')
        if mode == 'wq':
            a(f's_add_u32 s{S_SOFF}, s{S_WQB}, {imm*524288}')
            for i in range(4):
                a(f'buffer_load_dwordx4 v{V_DMAW}, s[{S_WQ}:{S_WQ+3}], s{S_SOFF} offen offset:{1024*i} lds')
                if i < 3:
                    a(f's_add_u32 s{S_SOFF}, s{S_SOFF}, 31744')
        else:
            a(f's_add_u32 s{S_SOFF}, s{S_ROT}, {(imm*8192) & 0x3ffff}')
            a(f's_and_b32 s{S_SOFF}, s{S_SOFF}, 0x3ffff')
            for i in range(4):
                a(f'buffer_load_dwordx4 v{V_DMA+i}, s[{S_KV}:{S_KV+3}], s{S_SOFF} offen offset:{1024*i}{KVF} lds')
    def DMA(tag, slot, mode, imm, classes=('K', 'V')):
        if 'nodma' in EXP: return
        lab = a.newlabel('nodma')
        a(f's_cmp_gt_u32 s{S_W}, {3 if "V" in classes else 1}')
        a(f's_cbranch_scc1 {lab}')
        dma_raw(slot, mode, imm)
        a.label(lab)
        for c in classes: Q[c].extend([tag] * 4)
    def XL(stage):
        base = V_X + 16 * (stage % 3)
        for u in range(4):
            a(f'buffer_load_dwordx4 v[{base+4*u}:{base+4*u+3}], v{V_XOFF}, s[{S_X}:{S_X+3}], 0 offen offset:{128*stage+16*u}')
        for c in CL: Q[c].extend([('X', stage)] * 4)
    def WAIT(tags):
        ns = {}
        for c in CL:
            q = Q[c]; last = -1
            for i, t in enumerate(q):
                if t in tags: last = i
            ns[c] = min(len(q) - 1 - last, 63)
            del q[:last + 1]
        if len(set(ns.values())) == 1:
            a(f's_waitcnt vmcnt({ns["K"]})'); return
        lV = a.newlabel('wv'); lN = a.newlabel('wn'); lj = a.newlabel('wj')
        a(f's_cmp_gt_u32 s{S_W}, 3'); a(f's_cbranch_scc1 {lN}')
        a(f's_cmp_gt_u32 s{S_W}, 1'); a(f's_cbranch_scc1 {lV}')
        a(f's_waitcnt vmcnt({ns["K"]})'); a(f's_branch {lj}')
        a.label(lV); a(f's_waitcnt vmcnt({ns["V"]})'); a(f's_branch {lj}')
        a.label(lN); a(f's_waitcnt vmcnt({ns["N"]})')
        a.label(lj)
    DMA(('W', 0), 2, 'wq', 0); XL(0); DMA(('W', 1), 3, 'wq', 1); XL(1)
    DMA(('S', 0), 0, 'kv', 0); DMA(('S', 1), 1, 'kv', 1)
    XL(2)
    for s in range(8):
        a.comment(f'==== Q stage {s}')
        WAIT([('W', s), ('X', s)])
        a('s_barrier')
        if s + 2 < 8:
            DMA(('W', s + 2), 2 + (s + 2) % 3, 'wq', s + 2)
        elif s == 6:
            DMA(('K0',), 4, 'kv', -1, classes=('K',))
        elif s == 7:
            DMA(('S', 2), 2, 'kv', 2)
        slot = s % 3
        xb = V_X + 16 * (s % 3)
        uses = [(u, mt) for u in range(4) for mt in range(4)]
        def rd(i):
            u, mt = uses[i]; fb = V_FR + 4 * (i % NFR)
            for part in range(2):
                a(f'ds_read_b64_tr_b16 v[{fb+2*part}:{fb+2*part+1}], v{V_TR+mt} offset:{slot*SLOTB + (8*u+4*part)*256}')
        for i in range(NFR - 1): rd(i)
        for i in range(16):
            nxt = i + NFR - 1
            if nxt < 16: rd(nxt)
            outstanding = min(nxt, 15) - i
            a(f's_waitcnt lgkmcnt({2*outstanding})')
            u, mt = uses[i]; fb = V_FR + 4 * (i % NFR)
            a(f'v_mfma_f32_32x32x16_bf16 v[{V_ACC+16*mt}:{V_ACC+16*mt+15}], v[{fb}:{fb+3}], v[{xb+4*u}:{xb+4*u+3}], v[{V_ACC+16*mt}:{V_ACC+16*mt+15}]')
        if s + 3 < 8:
            XL(s + 3)
    a('s_nop 15')
    for p in range(32):
        a(f'v_cvt_pk_bf16_f32 v{V_Q+p}, v{V_ACC+2*p}, v{V_ACC+2*p+1}')
    for i in range(64):
        a(f'v_mov_b32 v{V_ACC+i}, 0')
    for mt in range(4):
        a(f'v_sub_u32 v{V_TR+mt}, v{V_TR+mt}, v0')
    a(f'v_mov_b32 v{V_M}, 0xf149f2ca')
    a(f'v_mov_b32 v{V_MC}, 0xf149f2ca')
    a(f'v_mov_b32 v{V_L}, 0')
    WAIT([('K0',)])
    a('s_barrier')
    DMA(('S', 3), 3, 'kv', 3)
    def kread(i, sb, fslot):
        fb = V_FR + 4 * (fslot % NFR)
        if i == 0:
            a(f'ds_read_b128 v[{fb}:{fb+3}], v{V_KADDR} offset:{sb}')
        else:
            a(f'v_xor_b32 v{V_T2}, {16*i}, v{V_KADDR}')
            a(f'ds_read_b128 v[{fb}:{fb+3}], v{V_T2} offset:{sb}')
    def maxops(S):
        ops = []
        ops.append(f'v_max3_f32 v{V_T0}, v{S}, v{S+1}, v{S+2}')
        ops.append(f'v_max3_f32 v{V_T1}, v{S+3}, v{S+4}, v{S+5}')
        ops.append(f'v_max3_f32 v{V_T0}, v{V_T0}, v{S+6}, v{S+7}')
        ops.append(f'v_max3_f32 v{V_T1}, v{V_T1}, v{S+8}, v{S+9}')
        ops.append(f'v_max3_f32 v{V_T0}, v{V_T0}, v{S+10}, v{S+11}')
        ops.append(f'v_max3_f32 v{V_T1}, v{V_T1}, v{S+12}, v{S+13}')
        ops.append(f'v_max3_f32 v{V_T0}, v{V_T0}, v{S+14}, v{S+15}')
        ops.append(f'v_max_f32 v{V_T0}, v{V_T0}, v{V_T1}')
        ops.append(f'v_subrev_f32 v{V_T1}, s{S_THR}, v{V_T0}')
        ops.append(f'v_cmp_gt_f32 vcc, v{V_T1}, v{V_M}')
        return ops
    a(f'v_add_u32 v{V_T1}, 0x10000, v{V_KADDR}')
    S0 = V_S
    for half in range(2):
        for j in range(4):
            ks = 4 * half + j
            a(f'v_xor_b32 v{V_T2}, {16*ks}, v{V_T1}')
            a(f'ds_read_b128 v[{V_FR+4*j}:{V_FR+4*j+3}], v{V_T2}')
        for j in range(4):
            ks = 4 * half + j
            a(f's_waitcnt lgkmcnt({3-j})')
            c = '0' if ks == 0 else f'v[{S0}:{S0+15}]'
            a(f'v_mfma_f32_32x32x16_bf16 v[{S0}:{S0+15}], v[{V_FR+4*j}:{V_FR+4*j+3}], v[{V_Q+4*ks}:{V_Q+4*ks+3}], {c}')
    a('s_nop 15')
    for op in maxops(S0): a(op)

    def att_iter(slot, par, last=False):
        sb = slot * SLOTB
        S = V_S + 16 * par
        Sn = V_S + 16 * (par ^ 1)
        nk = 0 if last else 8
        uses = [('K', i) for i in range(nk)] + [('V', i) for i in range(8)]
        def rd(i):
            kind, n = uses[i]; fb = V_FR + 4 * (i % NFR)
            if kind == 'K':
                if n == 0:
                    return [f'ds_read_b128 v[{fb}:{fb+3}], v{V_KADDR} offset:{sb}'], 1
                return [f'v_xor_b32 v{V_T2}, {16*n}, v{V_KADDR}', f'ds_read_b128 v[{fb}:{fb+3}], v{V_T2} offset:{sb}'], 1
            ks, mt = n // 4, n % 4
            return [f'ds_read_b64_tr_b16 v[{fb+2*part}:{fb+2*part+1}], v{V_TR+mt} offset:{sb + 8192 + (16*ks+8*part)*256}' for part in range(2)], 2
        cnt = [rd(i)[1] for i in range(len(uses))]
        for i in range(NFR - 1):
            for op in rd(i)[0]: a(op)
        lab = a.newlabel('norescale')
        a(f's_cbranch_vccz {lab}')
        a(f'v_mov_b32 v{V_T1}, v{V_T0}')
        a('s_nop 1')
        a(f'v_permlane32_swap_b32 v{V_T0}, v{V_T1}')
        a(f'v_max3_f32 v{V_T0}, v{V_T0}, v{V_T1}, v{V_M}')
        a(f'v_sub_f32 v{V_T1}, v{V_M}, v{V_T0}')
        a(f'v_mul_f32 v{V_T1}, s{S_C}, v{V_T1}')
        a(f'v_exp_f32 v{V_T1}, v{V_T1}')
        a(f'v_mov_b32 v{V_M}, v{V_T0}')
        a(f'v_mul_f32 v{V_MC}, s{S_C}, v{V_T0}')
        a(f'v_mul_f32 v{V_L}, v{V_L}, v{V_T1}')
        for i in range(64):
            a(f'v_mul_f32 v{V_ACC+i}, v{V_ACC+i}, v{V_T1}')
        a.label(lab)
        fa = []
        for i in range(16):
            fa.append(f'v_fma_f32 v{S+i}, v{S+i}, s{S_C}, -v{V_MC}')
            if i >= 2: fa.append(f'v_exp_f32 v{S+i-2}, v{S+i-2}')
        fa.append(f'v_exp_f32 v{S+14}, v{S+14}'); fa.append(f'v_exp_f32 v{S+15}, v{S+15}')
        fa.append(f'v_add_f32 v{V_T0}, v{S}, v{S+1}')
        fa.append(f'v_add_f32 v{V_T1}, v{S+2}, v{S+3}')
        for i in range(4, 16, 2):
            tt = V_T0 if (i // 2) % 2 == 0 else V_T1
            fa.append(f'v_add_f32 v{tt}, v{tt}, v{S+i}')
            fa.append(f'v_add_f32 v{tt}, v{tt}, v{S+i+1}')
        for p in range(8):
            fa.append(f'v_cvt_pk_bf16_f32 v{S+p}, v{S+2*p}, v{S+2*p+1}')
        fa.append(f'v_add_f32 v{V_T0}, v{V_T0}, v{V_T1}')
        fa.append(f'v_add_f32 v{V_L}, v{V_L}, v{V_T0}')
        fb_ops = [] if last else maxops(Sn)
        nA = nk
        perA = (len(fa) + max(nA, 1) - 1) // max(nA, 1)
        fi = 0
        if nA:
            for _ in range(perA):
                a(fa[fi]); fi += 1
        else:
            for op in fa: a(op)
            fi = len(fa)
        issued = NFR - 1
        for i, (kind, n) in enumerate(uses):
            if issued < len(uses):
                for op in rd(issued)[0]: a(op)
                issued += 1
            out = sum(cnt[i+1:issued])
            a(f's_waitcnt lgkmcnt({out})')
            fb = V_FR + 4 * (i % NFR)
            if kind == 'K':
                c = '0' if n == 0 else f'v[{Sn}:{Sn+15}]'
                a(f'v_mfma_f32_32x32x16_bf16 v[{Sn}:{Sn+15}], v[{fb}:{fb+3}], v[{V_Q+4*n}:{V_Q+4*n+3}], {c}')
                lim = len(fa) if n == 7 else min(len(fa), fi + perA)
                while fi < lim:
                    a(fa[fi]); fi += 1
                if n == 7:
                    a('s_nop 1')
            else:
                ks, mt = n // 4, n % 4
                a(f'v_mfma_f32_32x32x16_bf16 v[{V_ACC+16*mt}:{V_ACC+16*mt+15}], v[{fb}:{fb+3}], v[{S+4*ks}:{S+4*ks+3}], v[{V_ACC+16*mt}:{V_ACC+16*mt+15}]')
                if n >= 3 and fb_ops:
                    for _ in range(3):
                        if fb_ops: a(fb_ops.pop(0))
        assert not fb_ops

    def dma_loop(slot):
        if 'nodma' in EXP: return
        lab = a.newlabel('nodma')
        a(f's_cmp_gt_u32 s{S_W}, 3')
        a(f's_cbranch_scc1 {lab}')
        a(f's_add_u32 m0, s{S_M0B}, {slot*SLOTB}')
        a('s_nop 0')
        for i in range(4):
            a(f'buffer_load_dwordx4 v{V_DMA+i}, s[{S_KV}:{S_KV+3}], s{S_T} offen offset:{1024*i}{KVF} lds')
        a.label(lab)
    a('s_waitcnt vmcnt(12)')
    a('s_barrier')
    att_iter(0, 0)
    a(f's_add_u32 s{S_T}, s{S_ROT}, {4*8192}')
    a(f's_and_b32 s{S_T}, s{S_T}, 0x3ffff')
    a(f's_mov_b32 s{S_CNT}, 0')
    a.label('att_loop')
    for k in range(4):
        t = 1 + k
        a('s_waitcnt vmcnt(8)')
        a('s_barrier')
        dma_loop((t + 3) % 4)
        a(f's_add_u32 s{S_T}, s{S_T}, 8192')
        a(f's_and_b32 s{S_T}, s{S_T}, 0x3ffff')
        att_iter(t % 4, t % 2)
    a(f's_add_u32 s{S_CNT}, s{S_CNT}, 1')
    a(f's_cmp_lt_u32 s{S_CNT}, 7')
    a('s_cbranch_scc1 att_loop')
    for t in range(29, 32):
        a.comment(f'==== att iter {t} (tail)')
        a(f's_waitcnt vmcnt({4*(31-t)})')
        a('s_barrier')
        att_iter(t % 4, t % 2, last=(t == 31))
    a('s_nop 15')
    a(f'v_mov_b32 v{V_T1}, v{V_L}')
    a('v_mbcnt_lo_u32_b32 v0, -1, 0')
    a('v_mbcnt_hi_u32_b32 v0, -1, v0')
    a(f'v_permlane32_swap_b32 v{V_L}, v{V_T1}')
    a(f'v_add_f32 v{V_L}, v{V_L}, v{V_T1}')
    a(f'v_rcp_f32 v{V_L}, v{V_L}')
    a('v_and_b32 v16, 31, v0')
    a('v_lshrrev_b32 v17, 5, v0')
    a('v_lshlrev_b32 v18, 12, v17')
    a('v_lshl_add_u32 v18, v16, 4, v18')
    a('s_lshl_b32 s7, s4, 18')
    a('v_add_u32 v18, s7, v18')
    for i in range(64):
        a(f'v_mul_f32 v{V_ACC+i}, v{V_ACC+i}, v{V_L}')
    for p in range(32):
        a(f'v_cvt_pk_bf16_f32 v{V_ACC+p}, v{V_ACC+2*p}, v{V_ACC+2*p+1}')
    for n in range(8):
        hfp, u = n // 4, n % 4
        a(f'buffer_store_dwordx4 v[{V_ACC+4*n}:{V_ACC+4*n+3}], v18, s[{S_O}:{S_O+3}], 0 offen offset:{u*1024 + hfp*512}')
    if 'timing' in EXP:
        a('s_memtime s[84:85]')
        a('s_memrealtime s[86:87]')
        a('s_waitcnt lgkmcnt(0)')
        a('s_sub_u32 s84, s84, s80')
        a('s_sub_u32 s86, s86, s82')
        a('s_mov_b32 s90, 256')
        a('s_mov_b32 s91, 0x00020000')
        a('s_and_b32 s92, s2, 31')
        a('s_lshl_b32 s92, s92, 3')
        a('v_mov_b32 v0, s92')
        a('v_mov_b32 v2, s84')
        a('v_mov_b32 v3, s86')
        a('s_cmp_lt_u32 s2, 32')
        a('s_cbranch_scc0 attn_end')
        a('buffer_store_dwordx2 v[2:3], v0, s[88:91], 0 offen')
    a.label('attn_end')
    a('s_endpgm')
    return NV

def gen_oproj(a):
    R = 6
    NSTG = 32
    V_DMAW = 1
    V_AOFF = 2
    V_TR = 3
    V_OOFF = 5
    V_RED = 6
    V_FR = 8
    V_B = 40
    V_ACC = 136
    NV = 168
    S_W = 4
    S_A = 8; S_WO = 12; S_OUT = 16
    S_M0B = 20; S_SOFF = 21; S_WB = 22; S_G = 23
    SL = 8192
    a.label('oproj_kernel')
    a('s_cmp_ge_u32 s2, 256')
    a('s_cbranch_scc1 oproj_end')
    a('s_load_dwordx2 s[40:41], s[0:1], 32')
    a('s_load_dwordx2 s[42:43], s[0:1], 72')
    a('s_load_dwordx2 s[44:45], s[0:1], 80')
    a('s_load_dwordx2 s[46:47], s[0:1], 96')
    a('v_lshrrev_b32 v1, 6, v0')
    a('v_and_b32 v0, 63, v0')
    a('s_bfe_u32 s3, s2, 0x10002')
    a('v_readfirstlane_b32 s4, v1')
    a('s_and_b32 s5, s2, 3')
    a('s_lshl_b32 s5, s5, 2')
    a('s_bfe_u32 s6, s2, 0x20003')
    a('s_add_u32 s5, s5, s6')
    a('s_lshr_b32 s6, s2, 5')
    a('s_cmp_ge_u32 s4, 5')
    a(f's_cselect_b32 s{S_G}, 1, 0')
    a(f's_mul_i32 s7, s{S_G}, 5')
    a('s_sub_u32 s4, s4, s7')
    a('s_waitcnt lgkmcnt(0)')
    a('s_cmp_eq_u32 s3, 0')
    a('s_cselect_b64 s[40:41], s[40:41], s[42:43]')
    a('s_mul_i32 s7, s3, 20971520')
    a('s_mul_i32 s34, s5, 1310720')
    a('s_add_u32 s7, s7, s34')
    a(f's_lshl_b32 s36, s{S_G}, 17')
    a('s_add_u32 s7, s7, s36')
    a(f's_add_u32 s{S_A}, s46, s7')
    a(f's_addc_u32 s{S_A+1}, s47, 0')
    a(f's_sub_u32 s{S_A+2}, 1310720, s36')
    a(f's_mov_b32 s{S_A+3}, 0x00020000')
    a('s_lshl_b32 s7, s6, 7')
    a(f's_lshl_b32 s36, s{S_G}, 21')
    a('s_add_u32 s36, s36, s7')
    a(f's_add_u32 s{S_WO}, s40, s36')
    a(f's_addc_u32 s{S_WO+1}, s41, 0')
    a(f's_sub_u32 s{S_WO+2}, 4194304, s36')
    a(f's_mov_b32 s{S_WO+3}, 0x00020000')
    a('s_mul_i32 s34, s5, 327680')
    a('s_lshl_b32 s35, s3, 10')
    a('s_add_u32 s35, s35, s7')
    a('s_add_u32 s34, s34, s35')
    a(f's_add_u32 s{S_OUT}, s44, s34')
    a(f's_addc_u32 s{S_OUT+1}, s45, 0')
    a(f's_sub_u32 s{S_OUT+2}, 327680, s35')
    a(f's_mov_b32 s{S_OUT+3}, 0x00020000')
    a(f's_mul_i32 s37, s{S_G}, {R*SL}')
    a(f's_lshl_b32 s{S_M0B}, s4, 11')
    a(f's_add_u32 s{S_M0B}, s{S_M0B}, s37')
    a(f's_lshl_b32 s{S_WB}, s4, 14')
    a('v_lshrrev_b32 v16, 3, v0')
    a('v_and_b32 v17, 7, v0')
    a('v_bfe_u32 v18, v16, 1, 1')
    a('v_lshlrev_b32 v18, 1, v18')
    a('v_xor_b32 v18, v17, v18')
    a('v_lshlrev_b32 v18, 4, v18')
    a(f'v_lshl_add_u32 v{V_DMAW}, v16, 10, v18')
    a('v_and_b32 v16, 31, v0')
    a('v_lshrrev_b32 v17, 5, v0')
    a('v_lshlrev_b32 v18, 6, v17')
    a(f'v_lshlrev_b32 v{V_AOFF}, 4, v0')
    a(f'v_lshl_add_u32 v{V_OOFF}, v16, 11, v18')
    a('s_lshl_b32 s7, s4, 18')
    a(f'v_add_u32 v{V_AOFF}, s7, v{V_AOFF}')
    a('s_lshl_b32 s7, s4, 16')
    a(f'v_add_u32 v{V_OOFF}, s7, v{V_OOFF}')
    a('s_lshl_b32 s7, s4, 13')
    a(f'v_lshlrev_b32 v{V_RED}, 4, v0')
    a(f'v_add_u32 v{V_RED}, s7, v{V_RED}')
    a('v_bfe_u32 v18, v0, 2, 2')
    a('v_and_b32 v19, 3, v0')
    a('v_bfe_u32 v20, v0, 4, 1')
    a('v_and_b32 v21, 1, v19')
    a('v_lshlrev_b32 v21, 6, v21')
    a('v_lshl_add_u32 v21, v20, 4, v21')
    a('v_lshrrev_b32 v22, 1, v19')
    a('v_lshl_add_u32 v21, v22, 3, v21')
    a('v_lshl_add_u32 v21, v18, 7, v21')
    a('v_lshl_add_u32 v21, v17, 12, v21')
    a('v_add_u32 v21, s37, v21')
    a('v_lshrrev_b32 v18, 1, v18')
    for mt in range(2):
        a(f'v_xor_b32 v22, {mt}, v18')
        a(f'v_lshl_add_u32 v{V_TR+mt}, v22, 5, v21')
    for i in range(32):
        a(f'v_mov_b32 v{V_ACC+i}, 0')
    QL = []; QN = []
    def issue(st):
        slot = st % R
        lab = a.newlabel('nodma')
        a(f's_cmp_gt_u32 s{S_W}, 3')
        a(f's_cbranch_scc1 {lab}')
        a(f's_add_u32 m0, s{S_M0B}, {slot*SL}')
        a(f's_add_u32 s{S_SOFF}, s{S_WB}, {st*65536}')
        a(f'buffer_load_dwordx4 v{V_DMAW}, s[{S_WO}:{S_WO+3}], s{S_SOFF} offen lds')
        a(f's_add_u32 s{S_SOFF}, s{S_SOFF}, 7168')
        a(f'buffer_load_dwordx4 v{V_DMAW}, s[{S_WO}:{S_WO+3}], s{S_SOFF} offen offset:1024 lds')
        a.label(lab)
        a(f's_mov_b32 s{S_SOFF}, {4096*st}')
        for u in range(4):
            a(f'buffer_load_dwordx4 v[{V_B+16*slot+4*u}:{V_B+16*slot+4*u+3}], v{V_AOFF}, s[{S_A}:{S_A+3}], s{S_SOFF} offen offset:{1024*u}')
        QL.extend([st] * 6); QN.extend([st] * 4)
    def WAIT(st):
        ns = []
        for q in (QL, QN):
            last = max(i for i, t in enumerate(q) if t == st)
            ns.append(len(q) - 1 - last); del q[:last + 1]
        if ns[0] == ns[1]:
            a(f's_waitcnt vmcnt({ns[0]})'); return
        l1 = a.newlabel('w4'); l2 = a.newlabel('wj')
        a(f's_cmp_gt_u32 s{S_W}, 3')
        a(f's_cbranch_scc1 {l1}')
        a(f's_waitcnt vmcnt({ns[0]})')
        a(f's_branch {l2}')
        a.label(l1)
        a(f's_waitcnt vmcnt({ns[1]})')
        a.label(l2)
    for st in range(R - 1):
        issue(st)
    for st in range(NSTG):
        slot = st % R
        WAIT(st)
        a('s_barrier')
        if st + R - 1 < NSTG:
            issue(st + R - 1)
        for u in range(4):
            fb = V_FR + 8 * u
            for mt in range(2):
                for part in range(2):
                    a(f'ds_read_b64_tr_b16 v[{fb+4*mt+2*part}:{fb+4*mt+2*part+1}], v{V_TR+mt} offset:{slot*SL + (8*u+4*part)*128}')
        for u in range(4):
            a(f's_waitcnt lgkmcnt({4*(3-u)})')
            fb = V_FR + 8 * u
            for mt in range(2):
                a(f'v_mfma_f32_32x32x16_bf16 v[{V_ACC+16*mt}:{V_ACC+16*mt+15}], v[{fb+4*mt}:{fb+4*mt+3}], v[{V_B+16*slot+4*u}:{V_B+16*slot+4*u+3}], v[{V_ACC+16*mt}:{V_ACC+16*mt+15}]')
    a('s_nop 15')
    a('s_barrier')
    a(f's_cmp_eq_u32 s{S_G}, 0')
    a('s_cbranch_scc1 op_g0')
    for n in range(8):
        a(f'ds_write_b128 v{V_RED}, v[{V_ACC+4*n}:{V_ACC+4*n+3}] offset:{1024*n}')
    a('s_waitcnt lgkmcnt(0)')
    a('s_barrier')
    a('s_endpgm')
    a.label('op_g0')
    a('s_barrier')
    for n in range(8):
        a(f'ds_read_b128 v[{V_B+4*n}:{V_B+4*n+3}], v{V_RED} offset:{1024*n}')
    a('s_waitcnt lgkmcnt(0)')
    for i in range(32):
        a(f'v_add_f32 v{V_ACC+i}, v{V_ACC+i}, v{V_B+i}')
    for p in range(16):
        a(f'v_cvt_pk_bf16_f32 v{V_ACC+p}, v{V_ACC+2*p}, v{V_ACC+2*p+1}')
    for n in range(4):
        a(f'buffer_store_dwordx4 v[{V_ACC+4*n}:{V_ACC+4*n+3}], v{V_OOFF}, s[{S_OUT}:{S_OUT+3}], 0 offen offset:{16*n}')
    a.label('oproj_end')
    a('s_endpgm')
    return NV

def kd(name, nv):
    return f""".section .rodata,"a"
.p2align 6
.amdhsa_kernel {name}
  .amdhsa_next_free_vgpr {nv}
  .amdhsa_next_free_sgpr 96
  .amdhsa_accum_offset {(nv+3)//4*4}
  .amdhsa_group_segment_fixed_size 0
  .amdhsa_kernarg_size 104
  .amdhsa_user_sgpr_count 2
  .amdhsa_user_sgpr_kernarg_segment_ptr 1
  .amdhsa_system_sgpr_workgroup_id_x 1
.end_amdhsa_kernel
"""

def main():
    out = HEADER
    out += '; @launch kernel=attn_kernel grid=(512,1,1) block=(640,1,1) lds=163840\n'
    out += '; @launch kernel=oproj_kernel grid=(256,1,1) block=(640,1,1) lds=98304\n'
    out += '.amdgcn_target "amdgcn-amd-amdhsa--gfx950"\n.text\n'
    a = Asm()
    nv1 = gen_attn(a)
    out += '.globl attn_kernel\n.p2align 8\n.type attn_kernel,@function\n' + a.text()
    a = Asm(); a.lbl = 10000
    nv2 = gen_oproj(a)
    out += '.globl oproj_kernel\n.p2align 8\n.type oproj_kernel,@function\n' + a.text()
    out += kd('attn_kernel', nv1) + kd('oproj_kernel', nv2)
    open(sys.argv[1] if len(sys.argv) > 1 else 'concat_heads__mha_block_cached__gqa_block_cached__near_ridge.s', 'w').write(out)

main()
```

```python
import sys, os
EXP = os.environ.get('EXP','')

HEADER = open('concat_heads__mha_block_cached__gqa_block_cached__near_ridge.s.ref').read().split('; Override launch')[0]

class Asm:
    def __init__(self):
        self.lines = []
        self.lbl = 0
    def __call__(self, s):
        if 'nolds' in EXP and s.startswith('ds_read'): return
        if 'nobar' in EXP and s.startswith('s_barrier'): return
        if 'nomfma' in EXP and s.startswith('v_mfma'): return
        self.lines.append('    ' + s)
    def label(self, name):
        self.lines.append(name + ':')
    def newlabel(self, p='L'):
        self.lbl += 1
        return f'{p}_{self.lbl}'
    def comment(self, s):
        self.lines.append('    ; ' + s)
    def text(self):
        return '\n'.join(self.lines) + '\n'

def vr(base, n=1):
    return f'v{base}' if n == 1 else f'v[{base}:{base+n-1}]'
def sr(base, n=1):
    return f's{base}' if n == 1 else f's[{base}:{base+n-1}]'

NSLOT = 4
SLOTB = 16384
SCALE_LOG2E = (128 ** -0.5) * 1.4426950408889634
THR_RAW = 8.0 / SCALE_LOG2E

import struct
def f32hex(x):
    return '0x%08x' % struct.unpack('<I', struct.pack('<f', x))[0]

KVF = ' nt'
for f in ('sc0','sc1','nt'):
    if 'kv'+f in EXP: KVF += ' '+f
def gen_attn(a):
    V_DMA = 1; V_TR = 5; V_KADDR = 9; V_M = 10; V_L = 11; V_MC = 12; V_T0 = 13; V_T1 = 14; V_T2 = 15
    V_DMAW = 13; V_XOFF = 14
    V_FR = 16; NFR = 6
    V_S = 40; V_Q = 72; V_X = 40; V_ACC = 104
    NV = 168
    S_W = 4; S_X = 8; S_WQ = 12; S_KV = 16; S_O = 20
    S_M0B = 24; S_SOFF = 25; S_T = 26; S_CNT = 27; S_C = 28; S_THR = 29; S_WQB = 30; S_KVB = 31; S_ROT = 33
    S_LB = 35; S_PAR = 36
    P = 40
    a.label('attn_kernel')
    a('s_cmp_ge_u32 s2, 512')
    a('s_cbranch_scc1 attn_end')
    a(f's_load_dwordx16 s[{P}:{P+15}], s[0:1], 0')
    a(f's_load_dwordx4 s[{P+16}:{P+19}], s[0:1], 64')
    a(f's_load_dwordx2 s[{P+20}:{P+21}], s[0:1], 96')
    if 'timing' in EXP:
        a('s_memtime s[80:81]')
        a('s_memrealtime s[82:83]')
        a('s_load_dwordx2 s[88:89], s[0:1], 88')
    a('v_lshrrev_b32 v1, 6, v0')
    a('v_and_b32 v0, 63, v0')
    a('s_nop 0')
    a('v_readfirstlane_b32 s4, v1')
    a('s_nop 3')
    a('s_lshl_b32 s2, s2, 1')
    a('s_lshr_b32 s35, s4, 2')
    a('s_and_b32 s7, s4, 3')
    a('s_bfe_u32 s34, s4, 0x10001')
    a(f's_and_b32 s{S_PAR}, s4, 1')
    a('s_cmp_ge_u32 s4, 8')
    a('s_cselect_b32 s35, s34, s35')
    a('s_cselect_b32 s4, 4, s7')
    a('s_add_u32 s2, s2, s35')
    a('s_mul_i32 s35, s35, 81920')
    a('s_lshr_b32 s3, s2, 9')
    a('s_lshr_b32 s5, s2, 5')
    a('s_and_b32 s5, s5, 15')
    a('s_and_b32 s6, s2, 31')
    a('s_waitcnt lgkmcnt(0)')
    a('s_cmp_eq_u32 s3, 0')
    a(f's_cselect_b64 s[64:65], s[{P}:{P+1}], s[{P+10}:{P+11}]')
    a(f's_cselect_b64 s[66:67], s[{P+2}:{P+3}], s[{P+12}:{P+13}]')
    a(f's_cselect_b64 s[68:69], s[{P+4}:{P+5}], s[{P+14}:{P+15}]')
    a(f's_cselect_b64 s[70:71], s[{P+6}:{P+7}], s[{P+16}:{P+17}]')
    a('s_cmp_lt_u32 s4, 2')
    a('s_cselect_b64 s[66:67], s[66:67], s[68:69]')
    a('s_mul_i32 s7, s5, 163840')
    a(f's_add_u32 s{S_X}, s64, s7')
    a(f's_addc_u32 s{S_X+1}, s65, 0')
    a(f's_mov_b32 s{S_X+2}, 163840')
    a(f's_mov_b32 s{S_X+3}, 0x00020000')
    a('s_lshl_b32 s7, s6, 8')
    a(f's_add_u32 s{S_WQ}, s70, s7')
    a(f's_addc_u32 s{S_WQ+1}, s71, 0')
    a(f's_sub_u32 s{S_WQ+2}, 4194304, s7')
    a(f's_mov_b32 s{S_WQ+3}, 0x00020000')
    a('s_and_b32 s7, s2, 511')
    a('s_lshl_b32 s7, s7, 18')
    a(f's_add_u32 s{S_KV}, s66, s7')
    a(f's_addc_u32 s{S_KV+1}, s67, 0')
    a(f's_mov_b32 s{S_KV+2}, 262144')
    a(f's_mov_b32 s{S_KV+3}, 0x00020000')
    a('s_mul_i32 s7, s3, 20971520')
    a('s_mul_i32 s34, s5, 1310720')
    a('s_add_u32 s7, s7, s34')
    a('s_lshl_b32 s34, s6, 13')
    a('s_add_u32 s7, s7, s34')
    a(f's_add_u32 s{S_O}, s{P+20}, s7')
    a(f's_addc_u32 s{S_O+1}, s{P+21}, 0')
    a(f's_sub_u32 s{S_O+2}, 1310720, s34')
    a(f's_mov_b32 s{S_O+3}, 0x00020000')
    a(f's_lshl_b32 s{S_M0B}, s4, 12')
    a(f's_add_u32 s{S_M0B}, s{S_M0B}, s35')
    a(f's_lshl_b32 s{S_WQB}, s4, 17')
    a(f's_and_b32 s{S_KVB}, s4, 1')
    a(f's_lshl_b32 s{S_KVB}, s{S_KVB}, 12')
    a(f's_lshr_b32 s{S_ROT}, s2, 5')
    a(f's_xor_b32 s{S_ROT}, s{S_ROT}, s2')
    a(f's_and_b32 s{S_ROT}, s{S_ROT}, 31')
    a(f's_lshl_b32 s{S_ROT}, s{S_ROT}, 13')
    a(f's_add_u32 s{S_ROT}, s{S_ROT}, s{S_KVB}')
    a('s_cmp_lt_u32 s4, 2')
    a('s_cselect_b32 s7, 8192, 0')
    a(f's_add_u32 s{S_ROT}, s{S_ROT}, s7')
    a(f's_mov_b32 s{S_C}, {f32hex(SCALE_LOG2E)}')
    a(f's_mov_b32 s{S_THR}, {f32hex(THR_RAW)}')
    a('v_lshrrev_b32 v16, 4, v0')
    a('v_and_b32 v17, 15, v0')
    a('v_lshlrev_b32 v18, 1, v16')
    a('v_xor_b32 v18, v17, v18')
    a('v_lshlrev_b32 v18, 4, v18')
    a(f'v_lshl_add_u32 v{V_DMAW}, v16, 13, v18')
    a('v_lshl_add_u32 v19, v16, 8, v18')
    a('v_xor_b32 v20, v17, v16')
    a('s_cmp_lt_u32 s4, 2')
    a('s_cselect_b64 vcc, -1, 0')
    for i in range(4):
        a(f'v_xor_b32 v21, {4*i}, v20')
        a('v_lshlrev_b32 v21, 4, v21')
        a('v_lshl_add_u32 v21, v16, 8, v21')
        a(f'v_cndmask_b32 v{V_DMA+i}, v19, v21, vcc')
    a('v_and_b32 v16, 31, v0')
    a('v_lshrrev_b32 v17, 5, v0')
    a('v_lshlrev_b32 v18, 6, v17')
    a(f'v_lshl_add_u32 v{V_XOFF}, v16, 10, v18')
    a(f's_lshl_b32 s7, s4, 15')
    a(f'v_add_u32 v{V_XOFF}, s7, v{V_XOFF}')
    a('v_and_b32 v18, 15, v16')
    a('v_lshlrev_b32 v19, 3, v17')
    a('v_xor_b32 v18, v18, v19')
    a('v_lshlrev_b32 v18, 4, v18')
    a(f'v_lshl_add_u32 v{V_KADDR}, v16, 8, v18')
    a(f'v_add_u32 v{V_KADDR}, s35, v{V_KADDR}')
    a('v_bfe_u32 v18, v0, 2, 2')
    a('v_and_b32 v19, 3, v0')
    a('v_bfe_u32 v20, v0, 4, 1')
    a('v_and_b32 v21, 1, v19')
    a('v_lshlrev_b32 v21, 7, v21')
    a('v_lshl_add_u32 v21, v20, 4, v21')
    a('v_lshrrev_b32 v22, 1, v19')
    a('v_lshl_add_u32 v21, v22, 3, v21')
    a('v_lshl_add_u32 v21, v18, 8, v21')
    a('v_lshl_add_u32 v21, v17, 13, v21')
    a('v_add_u32 v21, s35, v21')
    a('v_add_u32 v21, 32768, v21')
    for mt in range(4):
        a(f'v_xor_b32 v22, {mt}, v18')
        a(f'v_lshl_add_u32 v{V_TR+mt}, v22, 5, v21')
    a('v_mul_u32_u24 v0, 7168, v17')
    a('v_add_u32 v0, 32768, v0')
    for i in range(64):
        a(f'v_mov_b32 v{V_ACC+i}, 0')
    a(f's_cmp_gt_u32 s{S_W}, 3')
    a('s_cbranch_scc1 attn_half')

    def maxops(S):
        return [f'v_max3_f32 v{V_T0}, v{S}, v{S+1}, v{S+2}',
                f'v_max3_f32 v{V_T1}, v{S+3}, v{S+4}, v{S+5}',
                f'v_max3_f32 v{V_T0}, v{V_T0}, v{S+6}, v{S+7}',
                f'v_max3_f32 v{V_T1}, v{V_T1}, v{S+8}, v{S+9}',
                f'v_max3_f32 v{V_T0}, v{V_T0}, v{S+10}, v{S+11}',
                f'v_max3_f32 v{V_T1}, v{V_T1}, v{S+12}, v{S+13}',
                f'v_max3_f32 v{V_T0}, v{V_T0}, v{S+14}, v{S+15}',
                f'v_max_f32 v{V_T0}, v{V_T0}, v{V_T1}',
                f'v_subrev_f32 v{V_T1}, s{S_THR}, v{V_T0}',
                f'v_cmp_gt_f32 vcc, v{V_T1}, v{V_M}']
    def rescale():
        lab = a.newlabel('norescale')
        a(f's_cbranch_vccz {lab}')
        a(f'v_mov_b32 v{V_T1}, v{V_T0}')
        a('s_nop 1')
        a(f'v_permlane32_swap_b32 v{V_T0}, v{V_T1}')
        a(f'v_max3_f32 v{V_T0}, v{V_T0}, v{V_T1}, v{V_M}')
        a(f'v_sub_f32 v{V_T1}, v{V_M}, v{V_T0}')
        a(f'v_mul_f32 v{V_T1}, s{S_C}, v{V_T1}')
        a(f'v_exp_f32 v{V_T1}, v{V_T1}')
        a(f'v_mov_b32 v{V_M}, v{V_T0}')
        a(f'v_mul_f32 v{V_MC}, s{S_C}, v{V_T0}')
        a(f'v_mul_f32 v{V_L}, v{V_L}, v{V_T1}')
        for i in range(64):
            a(f'v_mul_f32 v{V_ACC+i}, v{V_ACC+i}, v{V_T1}')
        a.label(lab)
    def softmax_ops(S):
        fa = []
        for i in range(16):
            fa.append(f'v_fma_f32 v{S+i}, v{S+i}, s{S_C}, -v{V_MC}')
            if i >= 2: fa.append(f'v_exp_f32 v{S+i-2}, v{S+i-2}')
        fa.append(f'v_exp_f32 v{S+14}, v{S+14}'); fa.append(f'v_exp_f32 v{S+15}, v{S+15}')
        fa.append(f'v_add_f32 v{V_T0}, v{S}, v{S+1}')
        fa.append(f'v_add_f32 v{V_T1}, v{S+2}, v{S+3}')
        for i in range(4, 16, 2):
            tt = V_T0 if (i // 2) % 2 == 0 else V_T1
            fa.append(f'v_add_f32 v{tt}, v{tt}, v{S+i}')
            fa.append(f'v_add_f32 v{tt}, v{tt}, v{S+i+1}')
        for p in range(8):
            fa.append(f'v_cvt_pk_bf16_f32 v{S+p}, v{S+2*p}, v{S+2*p+1}')
        fa.append(f'v_add_f32 v{V_T0}, v{V_T0}, v{V_T1}')
        fa.append(f'v_add_f32 v{V_L}, v{V_L}, v{V_T0}')
        return fa
    def rd_ops(kind, n, fslot, sb):
        fb = V_FR + 4 * (fslot % NFR)
        if kind == 'K':
            if n == 0:
                return [f'ds_read_b128 v[{fb}:{fb+3}], v{V_KADDR} offset:{sb}'], 1
            return [f'v_xor_b32 v{V_T2}, {16*n}, v{V_KADDR}', f'ds_read_b128 v[{fb}:{fb+3}], v{V_T2} offset:{sb}'], 1
        ks, mt = n // 4, n % 4
        return [f'ds_read_b64_tr_b16 v[{fb+2*part}:{fb+2*part+1}], v{V_TR+mt} offset:{sb + 8192 + (16*ks+8*part)*256}' for part in range(2)], 2
    def att_iter(slot, S, Sn, do_qk=True, do_pv=True):
        sb = slot * SLOTB
        uses = ([('K', i) for i in range(8)] if do_qk else []) + ([('V', i) for i in range(8)] if do_pv else [])
        cnt = [rd_ops(k, n, i, sb)[1] for i, (k, n) in enumerate(uses)]
        for i in range(NFR - 1):
            for op in rd_ops(*uses[i], i, sb)[0]: a(op)
        fa = []
        if do_pv:
            rescale()
            fa = softmax_ops(S)
        fb_ops = maxops(Sn) if do_qk else []
        fi = 0
        if do_qk and do_pv:
            perA = (len(fa) + 7) // 8
            for _ in range(perA):
                a(fa[fi]); fi += 1
        else:
            for op in fa: a(op)
            fi = len(fa)
        issued = NFR - 1
        for i, (kind, n) in enumerate(uses):
            if issued < len(uses):
                for op in rd_ops(*uses[issued], issued, sb)[0]: a(op)
                issued += 1
            out = sum(cnt[i+1:issued])
            a(f's_waitcnt lgkmcnt({out})')
            fb = V_FR + 4 * (i % NFR)
            if kind == 'K':
                c = '0' if n == 0 else f'v[{Sn}:{Sn+15}]'
                a(f'v_mfma_f32_32x32x16_bf16 v[{Sn}:{Sn+15}], v[{fb}:{fb+3}], v[{V_Q+4*n}:{V_Q+4*n+3}], {c}')
                if do_pv:
                    lim = len(fa) if n == 7 else min(len(fa), fi + perA)
                    while fi < lim:
                        a(fa[fi]); fi += 1
                    if n == 7: a('s_nop 1')
            else:
                ks, mt = n // 4, n % 4
                a(f'v_mfma_f32_32x32x16_bf16 v[{V_ACC+16*mt}:{V_ACC+16*mt+15}], v[{fb}:{fb+3}], v[{S+4*ks}:{S+4*ks+3}], v[{V_ACC+16*mt}:{V_ACC+16*mt+15}]')
                if n >= 3 and fb_ops:
                    for _ in range(3):
                        if fb_ops: a(fb_ops.pop(0))
        if fb_ops:
            a('s_nop 15')
            for op in fb_ops: a(op)

    def qphase(kind):
        full = kind == 'full'
        CL = ('K', 'V') if full else ('N',)
        Q = {c: [] for c in CL}
        def DMA(tag, slot, mode, imm, classes=('K', 'V')):
            if not full or 'nodma' in EXP: return
            lab = None
            if 'V' not in classes:
                lab = a.newlabel('nodma')
                a(f's_cmp_gt_u32 s{S_W}, 1'); a(f's_cbranch_scc1 {lab}')
            a(f's_add_u32 m0, s{S_M0B}, {slot*SLOTB}')
            if mode == 'wq':
                a(f's_add_u32 s{S_SOFF}, s{S_WQB}, {imm*524288}')
                for i in range(4):
                    a(f'buffer_load_dwordx4 v{V_DMAW}, s[{S_WQ}:{S_WQ+3}], s{S_SOFF} offen offset:{1024*i} lds')
                    if i < 3: a(f's_add_u32 s{S_SOFF}, s{S_SOFF}, 31744')
            else:
                a(f's_add_u32 s{S_SOFF}, s{S_ROT}, {(imm*8192) & 0x3ffff}')
                a(f's_and_b32 s{S_SOFF}, s{S_SOFF}, 0x3ffff')
                for i in range(4):
                    a(f'buffer_load_dwordx4 v{V_DMA+i}, s[{S_KV}:{S_KV+3}], s{S_SOFF} offen offset:{1024*i}{KVF} lds')
            if lab: a.label(lab)
            for c in classes: Q[c].extend([tag] * 4)
        def XL(stage):
            base = V_X + 16 * (stage % 3)
            for u in range(4):
                a(f'buffer_load_dwordx4 v[{base+4*u}:{base+4*u+3}], v{V_XOFF}, s[{S_X}:{S_X+3}], 0 offen offset:{128*stage+16*u}')
            for c in CL: Q[c].extend([('X', stage)] * 4)
        def WAIT(tags):
            ns = {}
            for c in CL:
                q = Q[c]; last = -1
                for i, t in enumerate(q):
                    if t in tags: last = i
                ns[c] = min(len(q) - 1 - last, 63)
                del q[:last + 1]
            if len(set(ns.values())) == 1:
                a(f's_waitcnt vmcnt({list(ns.values())[0]})'); return
            lV = a.newlabel('wv'); lj = a.newlabel('wj')
            a(f's_cmp_gt_u32 s{S_W}, 1'); a(f's_cbranch_scc1 {lV}')
            a(f's_waitcnt vmcnt({ns["K"]})'); a(f's_branch {lj}')
            a.label(lV); a(f's_waitcnt vmcnt({ns["V"]})')
            a.label(lj)
        DMA(('W', 0), 2, 'wq', 0); XL(0); DMA(('W', 1), 3, 'wq', 1); XL(1)
        DMA(('S', 0), 0, 'kv', 0); DMA(('S', 1), 1, 'kv', 1)
        XL(2)
        for s in range(8):
            a.comment(f'==== Q stage {s}')
            WAIT([('W', s), ('X', s)])
            a('s_barrier')
            if s + 2 < 8:
                DMA(('W', s + 2), 2 + (s + 2) % 3, 'wq', s + 2)
            elif s == 6:
                DMA(('K0',), 4, 'kv', -1, classes=('K',))
            elif s == 7:
                DMA(('S', 2), 2, 'kv', 2)
            slot = s % 3
            xb = V_X + 16 * (s % 3)
            uses = [(u, mt) for u in range(4) for mt in range(4)]
            def rd(i):
                u, mt = uses[i]; fb = V_FR + 4 * (i % NFR)
                for part in range(2):
                    a(f'ds_read_b64_tr_b16 v[{fb+2*part}:{fb+2*part+1}], v{V_TR+mt} offset:{slot*SLOTB + (8*u+4*part)*256}')
            for i in range(NFR - 1): rd(i)
            for i in range(16):
                nxt = i + NFR - 1
                if nxt < 16: rd(nxt)
                outstanding = min(nxt, 15) - i
                a(f's_waitcnt lgkmcnt({2*outstanding})')
                u, mt = uses[i]; fb = V_FR + 4 * (i % NFR)
                a(f'v_mfma_f32_32x32x16_bf16 v[{V_ACC+16*mt}:{V_ACC+16*mt+15}], v[{fb}:{fb+3}], v[{xb+4*u}:{xb+4*u+3}], v[{V_ACC+16*mt}:{V_ACC+16*mt+15}]')
            if s + 3 < 8:
                XL(s + 3)
        a('s_nop 15')
        for p in range(32):
            a(f'v_cvt_pk_bf16_f32 v{V_Q+p}, v{V_ACC+2*p}, v{V_ACC+2*p+1}')
        for i in range(64):
            a(f'v_mov_b32 v{V_ACC+i}, 0')
        for mt in range(4):
            a(f'v_sub_u32 v{V_TR+mt}, v{V_TR+mt}, v0')
        a(f'v_mov_b32 v{V_M}, 0xf149f2ca')
        a(f'v_mov_b32 v{V_MC}, 0xf149f2ca')
        a(f'v_mov_b32 v{V_L}, 0')
        WAIT([('K0',)])
        a('s_barrier')
        DMA(('S', 3), 3, 'kv', 3)
        if kind != 'h1':
            a(f'v_add_u32 v{V_T1}, 0x10000, v{V_KADDR}')
            S0 = V_S
            for half in range(2):
                for j in range(4):
                    ks = 4 * half + j
                    a(f'v_xor_b32 v{V_T2}, {16*ks}, v{V_T1}')
                    a(f'ds_read_b128 v[{V_FR+4*j}:{V_FR+4*j+3}], v{V_T2}')
                for j in range(4):
                    ks = 4 * half + j
                    a(f's_waitcnt lgkmcnt({3-j})')
                    c = '0' if ks == 0 else f'v[{S0}:{S0+15}]'
                    a(f'v_mfma_f32_32x32x16_bf16 v[{S0}:{S0+15}], v[{V_FR+4*j}:{V_FR+4*j+3}], v[{V_Q+4*ks}:{V_Q+4*ks+3}], {c}')
            a('s_nop 15')
            for op in maxops(S0): a(op)

    def epilogue_store():
        a('v_mbcnt_lo_u32_b32 v0, -1, 0')
        a('v_mbcnt_hi_u32_b32 v0, -1, v0')
        a('v_and_b32 v16, 31, v0')
        a('v_lshrrev_b32 v17, 5, v0')
        a('v_lshlrev_b32 v18, 12, v17')
        a('v_lshl_add_u32 v18, v16, 4, v18')
        a('s_lshl_b32 s7, s4, 18')
        a('v_add_u32 v18, s7, v18')
        for p in range(32):
            a(f'v_cvt_pk_bf16_f32 v{V_ACC+p}, v{V_ACC+2*p}, v{V_ACC+2*p+1}')
        for n in range(8):
            hfp, u = n // 4, n % 4
            a(f'buffer_store_dwordx4 v[{V_ACC+4*n}:{V_ACC+4*n+3}], v18, s[{S_O}:{S_O+3}], 0 offen offset:{u*1024 + hfp*512}')
    def lsum():
        a(f'v_mov_b32 v{V_T1}, v{V_L}')
        a('s_nop 1')
        a(f'v_permlane32_swap_b32 v{V_L}, v{V_T1}')
        a(f'v_add_f32 v{V_L}, v{V_L}, v{V_T1}')

    qphase('full')
    def dma_loop(slot):
        if 'nodma' in EXP: return
        a(f's_add_u32 m0, s{S_M0B}, {slot*SLOTB}')
        a('s_nop 0')
        for i in range(4):
            a(f'buffer_load_dwordx4 v{V_DMA+i}, s[{S_KV}:{S_KV+3}], s{S_T} offen offset:{1024*i}{KVF} lds')
    a('s_waitcnt vmcnt(12)')
    a('s_barrier')
    att_iter(0, V_S, V_S + 16)
    a(f's_add_u32 s{S_T}, s{S_ROT}, {4*8192}')
    a(f's_and_b32 s{S_T}, s{S_T}, 0x3ffff')
    a(f's_mov_b32 s{S_CNT}, 0')
    a.label('att_loop')
    for k in range(4):
        t = 1 + k
        a('s_waitcnt vmcnt(8)')
        a('s_barrier')
        dma_loop((t + 3) % 4)
        a(f's_add_u32 s{S_T}, s{S_T}, 8192')
        a(f's_and_b32 s{S_T}, s{S_T}, 0x3ffff')
        att_iter(t % 4, V_S + 16 * (t % 2), V_S + 16 * ((t + 1) % 2))
    a(f's_add_u32 s{S_CNT}, s{S_CNT}, 1')
    a(f's_cmp_lt_u32 s{S_CNT}, 7')
    a('s_cbranch_scc1 att_loop')
    for t in range(29, 32):
        a.comment(f'==== att iter {t} (tail)')
        a(f's_waitcnt vmcnt({4*(31-t)})')
        a('s_barrier')
        att_iter(t % 4, V_S + 16 * (t % 2), V_S + 16 * ((t + 1) % 2), do_qk=(t != 31))
    a('s_nop 15')
    a('s_barrier')
    lsum()
    a(f'v_rcp_f32 v{V_L}, v{V_L}')
    a('s_nop 0')
    for i in range(64):
        a(f'v_mul_f32 v{V_ACC+i}, v{V_ACC+i}, v{V_L}')
    epilogue_store()
    if 'timing' in EXP:
        a('s_memtime s[84:85]')
        a('s_memrealtime s[86:87]')
        a('s_waitcnt lgkmcnt(0)')
        a('s_sub_u32 s84, s84, s80')
        a('s_sub_u32 s86, s86, s82')
        a('s_mov_b32 s90, 256')
        a('s_mov_b32 s91, 0x00020000')
        a('s_and_b32 s92, s2, 31')
        a('s_lshl_b32 s92, s92, 3')
        a('v_mov_b32 v0, s92')
        a('v_mov_b32 v2, s84')
        a('v_mov_b32 v3, s86')
        a('s_cmp_lt_u32 s2, 32')
        a('s_cbranch_scc0 attn_end')
        a('buffer_store_dwordx2 v[2:3], v0, s[88:91], 0 offen')
    a('s_endpgm')

    a.label('attn_half')
    a(f's_cmp_eq_u32 s{S_PAR}, 1')
    a('s_cbranch_scc1 attn_h1')
    for par in range(2):
        if par == 1: a.label('attn_h1')
        qphase(f'h{par}')
        def hiter(t, slot):
            if t % 2 == par:
                att_iter(slot, V_S, V_S, do_qk=False, do_pv=True)
            elif t != 31:
                att_iter(slot, V_S, V_S, do_qk=True, do_pv=False)
        a(f's_mov_b32 s{S_CNT}, 0')
        a.label(f'hloop{par}')
        for k in range(4):
            a('s_barrier')
            hiter(k, k)
        a(f's_add_u32 s{S_CNT}, s{S_CNT}, 1')
        a(f's_cmp_lt_u32 s{S_CNT}, 7')
        a(f's_cbranch_scc1 hloop{par}')
        for t in range(28, 32):
            a('s_barrier')
            hiter(t, t % 4)
        a('s_nop 15')
        a('s_barrier')
        lsum()
        a('v_mbcnt_lo_u32_b32 v0, -1, 0')
        a('v_mbcnt_hi_u32_b32 v0, -1, v0')
        a(f'v_lshlrev_b32 v{V_T2}, 4, v0')
        a(f'v_add_u32 v{V_T2}, s{S_LB}, v{V_T2}')
        a(f'v_lshlrev_b32 v{V_T1}, 2, v0')
        a(f'v_add_u32 v{V_T1}, s{S_LB}, v{V_T1}')
        if par == 1:
            for n in range(16):
                a(f'ds_write_b128 v{V_T2}, v[{V_ACC+4*n}:{V_ACC+4*n+3}] offset:{1024*n}')
            a(f'ds_write_b32 v{V_T1}, v{V_M} offset:16384')
            a(f'ds_write_b32 v{V_T1}, v{V_L} offset:16640')
            a('s_waitcnt lgkmcnt(0)')
            a('s_barrier')
            a('s_endpgm')
        else:
            a('s_barrier')
            a(f'ds_read_b32 v{V_FR}, v{V_T1} offset:16384')
            a(f'ds_read_b32 v{V_FR+1}, v{V_T1} offset:16640')
            for n in range(15):
                a(f'ds_read_b128 v[{V_S+4*n}:{V_S+4*n+3}], v{V_T2} offset:{1024*n}')
            a(f'ds_read_b128 v[{V_FR+4}:{V_FR+7}], v{V_T2} offset:{1024*15}')
            a('s_waitcnt lgkmcnt(0)')
            a(f'v_max_f32 v{V_T0}, v{V_M}, v{V_FR}')
            a(f'v_sub_f32 v{V_T1}, v{V_M}, v{V_T0}')
            a(f'v_sub_f32 v{V_T2}, v{V_FR}, v{V_T0}')
            a(f'v_mul_f32 v{V_T1}, s{S_C}, v{V_T1}')
            a(f'v_mul_f32 v{V_T2}, s{S_C}, v{V_T2}')
            a(f'v_exp_f32 v{V_T1}, v{V_T1}')
            a(f'v_exp_f32 v{V_T2}, v{V_T2}')
            a('s_nop 0')
            a(f'v_mul_f32 v{V_L}, v{V_L}, v{V_T1}')
            a(f'v_fma_f32 v{V_L}, v{V_FR+1}, v{V_T2}, v{V_L}')
            a(f'v_rcp_f32 v{V_L}, v{V_L}')
            a('s_nop 0')
            a(f'v_mul_f32 v{V_T1}, v{V_T1}, v{V_L}')
            a(f'v_mul_f32 v{V_T2}, v{V_T2}, v{V_L}')
            for i in range(64):
                src = (V_S + i) if i < 60 else (V_FR + 4 + i - 60)
                a(f'v_mul_f32 v{V_ACC+i}, v{V_ACC+i}, v{V_T1}')
                a(f'v_fma_f32 v{V_ACC+i}, v{src}, v{V_T2}, v{V_ACC+i}')
            epilogue_store()
            a('s_endpgm')
    a.label('attn_end')
    a('s_endpgm')
    return NV

OWF = os.environ.get('OWF','')
OBF = os.environ.get('OBF','')
def gen_oproj(a):
    R = int(os.environ.get('OR', '6'))
    NSTG = 32
    V_DMAW = 1
    V_AOFF = 2
    V_TR = 3
    V_OOFF = 5
    V_RED = 6
    V_FR = 8
    V_B = 40
    V_ACC = 136
    NV = 168
    S_W = 4
    S_A = 8; S_WO = 12; S_OUT = 16
    S_M0B = 20; S_SOFF = 21; S_WB = 22; S_G = 23
    SL = 8192
    a.label('oproj_kernel')
    a('s_cmp_ge_u32 s2, 256')
    a('s_cbranch_scc1 oproj_end')
    a('s_load_dwordx2 s[40:41], s[0:1], 32')
    a('s_load_dwordx2 s[42:43], s[0:1], 72')
    a('s_load_dwordx2 s[44:45], s[0:1], 80')
    a('s_load_dwordx2 s[46:47], s[0:1], 96')
    a('v_lshrrev_b32 v1, 6, v0')
    a('v_and_b32 v0, 63, v0')
    a('s_bfe_u32 s3, s2, 0x10002')
    a('v_readfirstlane_b32 s4, v1')
    a('s_and_b32 s5, s2, 3')
    a('s_lshl_b32 s5, s5, 2')
    a('s_bfe_u32 s6, s2, 0x20003')
    a('s_add_u32 s5, s5, s6')
    a('s_lshr_b32 s6, s2, 5')
    a('s_cmp_ge_u32 s4, 5')
    a(f's_cselect_b32 s{S_G}, 1, 0')
    a(f's_mul_i32 s7, s{S_G}, 5')
    a('s_sub_u32 s4, s4, s7')
    a('s_waitcnt lgkmcnt(0)')
    a('s_cmp_eq_u32 s3, 0')
    a('s_cselect_b64 s[40:41], s[40:41], s[42:43]')
    a('s_mul_i32 s7, s3, 20971520')
    a('s_mul_i32 s34, s5, 1310720')
    a('s_add_u32 s7, s7, s34')
    a(f's_lshl_b32 s36, s{S_G}, 17')
    a('s_add_u32 s7, s7, s36')
    a(f's_add_u32 s{S_A}, s46, s7')
    a(f's_addc_u32 s{S_A+1}, s47, 0')
    a(f's_sub_u32 s{S_A+2}, 1310720, s36')
    a(f's_mov_b32 s{S_A+3}, 0x00020000')
    a('s_lshl_b32 s7, s6, 7')
    a(f's_lshl_b32 s36, s{S_G}, 21')
    a('s_add_u32 s36, s36, s7')
    a(f's_add_u32 s{S_WO}, s40, s36')
    a(f's_addc_u32 s{S_WO+1}, s41, 0')
    a(f's_sub_u32 s{S_WO+2}, 4194304, s36')
    a(f's_mov_b32 s{S_WO+3}, 0x00020000')
    a('s_mul_i32 s34, s5, 327680')
    a('s_lshl_b32 s35, s3, 10')
    a('s_add_u32 s35, s35, s7')
    a('s_add_u32 s34, s34, s35')
    a(f's_add_u32 s{S_OUT}, s44, s34')
    a(f's_addc_u32 s{S_OUT+1}, s45, 0')
    a(f's_sub_u32 s{S_OUT+2}, 327680, s35')
    a(f's_mov_b32 s{S_OUT+3}, 0x00020000')
    a(f's_mul_i32 s37, s{S_G}, {R*SL}')
    a(f's_lshl_b32 s{S_M0B}, s4, 11')
    a(f's_add_u32 s{S_M0B}, s{S_M0B}, s37')
    a(f's_lshl_b32 s{S_WB}, s4, 14')
    a('v_lshrrev_b32 v16, 3, v0')
    a('v_and_b32 v17, 7, v0')
    a('v_bfe_u32 v18, v16, 1, 1')
    a('v_lshlrev_b32 v18, 1, v18')
    a('v_xor_b32 v18, v17, v18')
    a('v_lshlrev_b32 v18, 4, v18')
    a(f'v_lshl_add_u32 v{V_DMAW}, v16, 10, v18')
    a('v_and_b32 v16, 31, v0')
    a('v_lshrrev_b32 v17, 5, v0')
    a('v_lshlrev_b32 v18, 6, v17')
    a(f'v_lshlrev_b32 v{V_AOFF}, 4, v0')
    a(f'v_lshl_add_u32 v{V_OOFF}, v16, 11, v18')
    a('s_lshl_b32 s7, s4, 18')
    a(f'v_add_u32 v{V_AOFF}, s7, v{V_AOFF}')
    a('s_lshl_b32 s7, s4, 16')
    a(f'v_add_u32 v{V_OOFF}, s7, v{V_OOFF}')
    a('s_lshl_b32 s7, s4, 13')
    a(f'v_lshlrev_b32 v{V_RED}, 4, v0')
    a(f'v_add_u32 v{V_RED}, s7, v{V_RED}')
    a('v_bfe_u32 v18, v0, 2, 2')
    a('v_and_b32 v19, 3, v0')
    a('v_bfe_u32 v20, v0, 4, 1')
    a('v_and_b32 v21, 1, v19')
    a('v_lshlrev_b32 v21, 6, v21')
    a('v_lshl_add_u32 v21, v20, 4, v21')
    a('v_lshrrev_b32 v22, 1, v19')
    a('v_lshl_add_u32 v21, v22, 3, v21')
    a('v_lshl_add_u32 v21, v18, 7, v21')
    a('v_lshl_add_u32 v21, v17, 12, v21')
    a('v_add_u32 v21, s37, v21')
    a('v_lshrrev_b32 v18, 1, v18')
    for mt in range(2):
        a(f'v_xor_b32 v22, {mt}, v18')
        a(f'v_lshl_add_u32 v{V_TR+mt}, v22, 5, v21')
    for i in range(32):
        a(f'v_mov_b32 v{V_ACC+i}, 0')
    QL = []; QN = []
    def issue(st):
        slot = st % R
        lab = a.newlabel('nodma')
        a(f's_cmp_gt_u32 s{S_W}, 3')
        a(f's_cbranch_scc1 {lab}')
        a(f's_add_u32 m0, s{S_M0B}, {slot*SL}')
        a(f's_add_u32 s{S_SOFF}, s{S_WB}, {st*65536}')
        if 'onodma' not in EXP:
            a(f'buffer_load_dwordx4 v{V_DMAW}, s[{S_WO}:{S_WO+3}], s{S_SOFF} offen{OWF} lds')
            a(f's_add_u32 s{S_SOFF}, s{S_SOFF}, 7168')
            a(f'buffer_load_dwordx4 v{V_DMAW}, s[{S_WO}:{S_WO+3}], s{S_SOFF} offen offset:1024{OWF} lds')
        a.label(lab)
        a(f's_mov_b32 s{S_SOFF}, {4096*st}')
        for u in range(4 if 'onob' not in EXP else 0):
            a(f'buffer_load_dwordx4 v[{V_B+16*slot+4*u}:{V_B+16*slot+4*u+3}], v{V_AOFF}, s[{S_A}:{S_A+3}], s{S_SOFF} offen offset:{1024*u}{OBF}')
        QL.extend([st] * 6); QN.extend([st] * 4)
    def WAIT(st):
        ns = []
        for q in (QL, QN):
            last = max(i for i, t in enumerate(q) if t == st)
            ns.append(len(q) - 1 - last); del q[:last + 1]
        if ns[0] == ns[1]:
            a(f's_waitcnt vmcnt({ns[0]})'); return
        l1 = a.newlabel('w4'); l2 = a.newlabel('wj')
        a(f's_cmp_gt_u32 s{S_W}, 3')
        a(f's_cbranch_scc1 {l1}')
        a(f's_waitcnt vmcnt({ns[0]})')
        a(f's_branch {l2}')
        a.label(l1)
        a(f's_waitcnt vmcnt({ns[1]})')
        a.label(l2)
    for st in range(R - 1):
        issue(st)
    for st in range(NSTG):
        slot = st % R
        WAIT(st)
        a('s_barrier')
        if st + R - 1 < NSTG:
            issue(st + R - 1)
        for u in range(4):
            fb = V_FR + 8 * u
            for mt in range(2):
                for part in range(2):
                    a(f'ds_read_b64_tr_b16 v[{fb+4*mt+2*part}:{fb+4*mt+2*part+1}], v{V_TR+mt} offset:{slot*SL + (8*u+4*part)*128}')
        for u in range(4):
            a(f's_waitcnt lgkmcnt({4*(3-u)})')
            fb = V_FR + 8 * u
            for mt in range(2):
                a(f'v_mfma_f32_32x32x16_bf16 v[{V_ACC+16*mt}:{V_ACC+16*mt+15}], v[{fb+4*mt}:{fb+4*mt+3}], v[{V_B+16*slot+4*u}:{V_B+16*slot+4*u+3}], v[{V_ACC+16*mt}:{V_ACC+16*mt+15}]')
    a('s_nop 15')
    a('s_barrier')
    a(f's_cmp_eq_u32 s{S_G}, 0')
    a('s_cbranch_scc1 op_g0')
    for n in range(8):
        a(f'ds_write_b128 v{V_RED}, v[{V_ACC+4*n}:{V_ACC+4*n+3}] offset:{1024*n}')
    a('s_waitcnt lgkmcnt(0)')
    a('s_barrier')
    a('s_endpgm')
    a.label('op_g0')
    a('s_barrier')
    for n in range(8):
        a(f'ds_read_b128 v[{V_B+4*n}:{V_B+4*n+3}], v{V_RED} offset:{1024*n}')
    a('s_waitcnt lgkmcnt(0)')
    for i in range(32):
        a(f'v_add_f32 v{V_ACC+i}, v{V_ACC+i}, v{V_B+i}')
    for p in range(16):
        a(f'v_cvt_pk_bf16_f32 v{V_ACC+p}, v{V_ACC+2*p}, v{V_ACC+2*p+1}')
    for n in range(4):
        a(f'buffer_store_dwordx4 v[{V_ACC+4*n}:{V_ACC+4*n+3}], v{V_OOFF}, s[{S_OUT}:{S_OUT+3}], 0 offen offset:{16*n}')
    a.label('oproj_end')
    a('s_endpgm')
    return NV

def kd(name, nv):
    return f""".section .rodata,"a"
.p2align 6
.amdhsa_kernel {name}
  .amdhsa_next_free_vgpr {nv}
  .amdhsa_next_free_sgpr 96
  .amdhsa_accum_offset {(nv+3)//4*4}
  .amdhsa_group_segment_fixed_size 0
  .amdhsa_kernarg_size 104
  .amdhsa_user_sgpr_count 2
  .amdhsa_user_sgpr_kernarg_segment_ptr 1
  .amdhsa_system_sgpr_workgroup_id_x 1
.end_amdhsa_kernel
"""

def main():
    out = HEADER
    out += '; @launch kernel=attn_kernel grid=(512,1,1) block=(768,1,1) lds=163840\n'
    out += '; @launch kernel=oproj_kernel grid=(256,1,1) block=(640,1,1) lds=98304\n'
    out += '.amdgcn_target "amdgcn-amd-amdhsa--gfx950"\n.text\n'
    a = Asm()
    nv1 = gen_attn(a)
    out += '.globl attn_kernel\n.p2align 8\n.type attn_kernel,@function\n' + a.text()
    a = Asm(); a.lbl = 10000
    nv2 = gen_oproj(a)
    out += '.globl oproj_kernel\n.p2align 8\n.type oproj_kernel,@function\n' + a.text()
    out += kd('attn_kernel', nv1) + kd('oproj_kernel', nv2)
    open(sys.argv[1] if len(sys.argv) > 1 else 'concat_heads__mha_block_cached__gqa_block_cached__near_ridge.s', 'w').write(out)

main()
```

```python
import sys, os
EXP = os.environ.get('EXP','')

HEADER = open('concat_heads__mha_block_cached__gqa_block_cached__near_ridge.s.ref').read().split('; Override launch')[0]

class Asm:
    def __init__(self):
        self.lines = []
        self.lbl = 0
    def __call__(self, s):
        if 'nolds' in EXP and s.startswith('ds_read'): return
        if 'nobar' in EXP and s.startswith('s_barrier'): return
        if 'nomfma' in EXP and s.startswith('v_mfma'): return
        self.lines.append('    ' + s)
    def label(self, name):
        self.lines.append(name + ':')
    def newlabel(self, p='L'):
        self.lbl += 1
        return f'{p}_{self.lbl}'
    def comment(self, s):
        self.lines.append('    ; ' + s)
    def text(self):
        return '\n'.join(self.lines) + '\n'

def vr(base, n=1):
    return f'v{base}' if n == 1 else f'v[{base}:{base+n-1}]'
def sr(base, n=1):
    return f's{base}' if n == 1 else f's[{base}:{base+n-1}]'

NSLOT = 4
SLOTB = 16384
SCALE_LOG2E = (128 ** -0.5) * 1.4426950408889634
THR_RAW = 8.0 / SCALE_LOG2E

import struct
def f32hex(x):
    return '0x%08x' % struct.unpack('<I', struct.pack('<f', x))[0]

KVF = ' nt'
for f in ('sc0','sc1','nt'):
    if 'kv'+f in EXP: KVF += ' '+f
def gen_attn(a):
    V_DMA = 1; V_TR = 5; V_KADDR = 9; V_L = 11; V_T0 = 13; V_T1 = 14; V_T2 = 15
    V_DMAW = 13; V_XOFF = 14
    V_FR = 16; NFR = 6
    V_S = 40; V_NEGM = 56; V_Q = 72; V_X = 40; V_ACC = 104
    NV = 168
    S_W = 4; S_X = 8; S_WQ = 12; S_KV = 16; S_O = 20
    S_M0B = 24; S_SOFF = 25; S_T = 26; S_CNT = 27; S_C = 28; S_THR = 29; S_WQB = 30; S_KVB = 31; S_ROT = 33
    S_ONES = 37
    P = 40
    a.label('attn_kernel')
    a('s_cmp_ge_u32 s2, 512')
    a('s_cbranch_scc1 attn_end')
    a(f's_load_dwordx16 s[{P}:{P+15}], s[0:1], 0')
    a(f's_load_dwordx4 s[{P+16}:{P+19}], s[0:1], 64')
    a(f's_load_dwordx2 s[{P+20}:{P+21}], s[0:1], 96')
    if 'timing' in EXP:
        a('s_memtime s[80:81]')
        a('s_memrealtime s[82:83]')
        a('s_load_dwordx2 s[88:89], s[0:1], 88')
    a('v_lshrrev_b32 v1, 6, v0')
    a('v_and_b32 v0, 63, v0')
    a('s_nop 0')
    a('v_readfirstlane_b32 s4, v1')
    a('s_nop 3')
    a('s_lshl_b32 s2, s2, 1')
    a('s_cmp_ge_u32 s4, 5')
    a('s_cselect_b32 s35, 1, 0')
    a('s_add_u32 s2, s2, s35')
    a('s_mul_i32 s7, s35, 5')
    a('s_sub_u32 s4, s4, s7')
    a('s_mul_i32 s35, s35, 81920')
    a('s_lshr_b32 s3, s2, 9')
    a('s_lshr_b32 s5, s2, 5')
    a('s_and_b32 s5, s5, 15')
    a('s_and_b32 s6, s2, 31')
    a('s_waitcnt lgkmcnt(0)')
    a('s_cmp_eq_u32 s3, 0')
    a(f's_cselect_b64 s[64:65], s[{P}:{P+1}], s[{P+10}:{P+11}]')
    a(f's_cselect_b64 s[66:67], s[{P+2}:{P+3}], s[{P+12}:{P+13}]')
    a(f's_cselect_b64 s[68:69], s[{P+4}:{P+5}], s[{P+14}:{P+15}]')
    a(f's_cselect_b64 s[70:71], s[{P+6}:{P+7}], s[{P+16}:{P+17}]')
    a('s_cmp_lt_u32 s4, 2')
    a('s_cselect_b64 s[66:67], s[66:67], s[68:69]')
    a('s_mul_i32 s7, s5, 163840')
    a(f's_add_u32 s{S_X}, s64, s7')
    a(f's_addc_u32 s{S_X+1}, s65, 0')
    a(f's_mov_b32 s{S_X+2}, 163840')
    a(f's_mov_b32 s{S_X+3}, 0x00020000')
    a('s_lshl_b32 s7, s6, 8')
    a(f's_add_u32 s{S_WQ}, s70, s7')
    a(f's_addc_u32 s{S_WQ+1}, s71, 0')
    a(f's_sub_u32 s{S_WQ+2}, 4194304, s7')
    a(f's_mov_b32 s{S_WQ+3}, 0x00020000')
    a('s_and_b32 s7, s2, 511')
    a('s_lshl_b32 s7, s7, 18')
    a(f's_add_u32 s{S_KV}, s66, s7')
    a(f's_addc_u32 s{S_KV+1}, s67, 0')
    a(f's_mov_b32 s{S_KV+2}, 262144')
    a(f's_mov_b32 s{S_KV+3}, 0x00020000')
    a('s_mul_i32 s7, s3, 20971520')
    a('s_mul_i32 s34, s5, 1310720')
    a('s_add_u32 s7, s7, s34')
    a('s_lshl_b32 s34, s6, 13')
    a('s_add_u32 s7, s7, s34')
    a(f's_add_u32 s{S_O}, s{P+20}, s7')
    a(f's_addc_u32 s{S_O+1}, s{P+21}, 0')
    a(f's_sub_u32 s{S_O+2}, 1310720, s34')
    a(f's_mov_b32 s{S_O+3}, 0x00020000')
    a(f's_lshl_b32 s{S_M0B}, s4, 12')
    a(f's_add_u32 s{S_M0B}, s{S_M0B}, s35')
    a(f's_lshl_b32 s{S_WQB}, s4, 17')
    a(f's_and_b32 s{S_KVB}, s4, 1')
    a(f's_lshl_b32 s{S_KVB}, s{S_KVB}, 12')
    a(f's_lshr_b32 s{S_ROT}, s2, 5')
    a(f's_xor_b32 s{S_ROT}, s{S_ROT}, s2')
    a(f's_and_b32 s{S_ROT}, s{S_ROT}, 31')
    a(f's_lshl_b32 s{S_ROT}, s{S_ROT}, 13')
    a(f's_add_u32 s{S_ROT}, s{S_ROT}, s{S_KVB}')
    a(f's_mov_b32 s{S_C}, {f32hex(SCALE_LOG2E)}')
    a(f's_mov_b32 s{S_THR}, {f32hex(8.0)}')
    a(f's_mov_b32 s{S_ONES}, 0x3f803f80')
    a('v_lshrrev_b32 v16, 4, v0')
    a('v_and_b32 v17, 15, v0')
    a('v_lshlrev_b32 v18, 1, v16')
    a('v_xor_b32 v18, v17, v18')
    a('v_lshlrev_b32 v18, 4, v18')
    a(f'v_lshl_add_u32 v{V_DMAW}, v16, 13, v18')
    a('v_lshl_add_u32 v19, v16, 8, v18')
    a('v_xor_b32 v20, v17, v16')
    a('s_cmp_lt_u32 s4, 2')
    a('s_cselect_b64 vcc, -1, 0')
    for i in range(4):
        a(f'v_xor_b32 v21, {4*i}, v20')
        a('v_lshlrev_b32 v21, 4, v21')
        a('v_lshl_add_u32 v21, v16, 8, v21')
        a(f'v_cndmask_b32 v{V_DMA+i}, v19, v21, vcc')
    a('v_and_b32 v16, 31, v0')
    a('v_lshrrev_b32 v17, 5, v0')
    a('v_lshlrev_b32 v18, 6, v17')
    a(f'v_lshl_add_u32 v{V_XOFF}, v16, 10, v18')
    a(f's_lshl_b32 s7, s4, 15')
    a(f'v_add_u32 v{V_XOFF}, s7, v{V_XOFF}')
    a('v_and_b32 v18, 15, v16')
    a('v_lshlrev_b32 v19, 3, v17')
    a('v_xor_b32 v18, v18, v19')
    a('v_lshlrev_b32 v18, 4, v18')
    a(f'v_lshl_add_u32 v{V_KADDR}, v16, 8, v18')
    a(f'v_add_u32 v{V_KADDR}, s35, v{V_KADDR}')
    a('v_bfe_u32 v18, v0, 2, 2')
    a('v_and_b32 v19, 3, v0')
    a('v_bfe_u32 v20, v0, 4, 1')
    a('v_and_b32 v21, 1, v19')
    a('v_lshlrev_b32 v21, 7, v21')
    a('v_lshl_add_u32 v21, v20, 4, v21')
    a('v_lshrrev_b32 v22, 1, v19')
    a('v_lshl_add_u32 v21, v22, 3, v21')
    a('v_lshl_add_u32 v21, v18, 8, v21')
    a('v_lshl_add_u32 v21, v17, 13, v21')
    a('v_add_u32 v21, s35, v21')
    a('v_add_u32 v21, 32768, v21')
    for mt in range(4):
        a(f'v_xor_b32 v22, {mt}, v18')
        a(f'v_lshl_add_u32 v{V_TR+mt}, v22, 5, v21')
    a('v_mul_u32_u24 v0, 7168, v17')
    a('v_add_u32 v0, 32768, v0')
    for i in range(64):
        a(f'v_mov_b32 v{V_ACC+i}, 0')

    CL = ('L', 'N')
    Q = {c: [] for c in CL}
    def DMA(tag, slot, mode, imm):
        if 'nodma' in EXP: return
        lab = a.newlabel('nodma')
        a(f's_cmp_gt_u32 s{S_W}, 3'); a(f's_cbranch_scc1 {lab}')
        a(f's_add_u32 m0, s{S_M0B}, {slot*SLOTB}')
        if mode == 'wq':
            a(f's_add_u32 s{S_SOFF}, s{S_WQB}, {imm*524288}')
            for i in range(4):
                a(f'buffer_load_dwordx4 v{V_DMAW}, s[{S_WQ}:{S_WQ+3}], s{S_SOFF} offen offset:{1024*i} lds')
                if i < 3: a(f's_add_u32 s{S_SOFF}, s{S_SOFF}, 31744')
        else:
            a(f's_add_u32 s{S_SOFF}, s{S_ROT}, {(imm*8192) & 0x3ffff}')
            a(f's_and_b32 s{S_SOFF}, s{S_SOFF}, 0x3ffff')
            for i in range(4):
                a(f'buffer_load_dwordx4 v{V_DMA+i}, s[{S_KV}:{S_KV+3}], s{S_SOFF} offen offset:{1024*i}{KVF} lds')
        a.label(lab)
        Q['L'].extend([tag] * 4)
    def XL(stage):
        base = V_X + 16 * (stage % 3)
        for u in range(4):
            a(f'buffer_load_dwordx4 v[{base+4*u}:{base+4*u+3}], v{V_XOFF}, s[{S_X}:{S_X+3}], 0 offen offset:{128*stage+16*u}')
        for c in CL: Q[c].extend([('X', stage)] * 4)
    def WAIT(tags):
        ns = {}
        for c in CL:
            q = Q[c]; last = -1
            for i, t in enumerate(q):
                if t in tags: last = i
            ns[c] = min(len(q) - 1 - last, 63)
            del q[:last + 1]
        if len(set(ns.values())) == 1:
            a(f's_waitcnt vmcnt({ns["L"]})'); return
        lN = a.newlabel('wn'); lj = a.newlabel('wj')
        a(f's_cmp_gt_u32 s{S_W}, 3'); a(f's_cbranch_scc1 {lN}')
        a(f's_waitcnt vmcnt({ns["L"]})'); a(f's_branch {lj}')
        a.label(lN); a(f's_waitcnt vmcnt({ns["N"]})')
        a.label(lj)
    DMA(('W', 0), 2, 'wq', 0); XL(0); DMA(('W', 1), 3, 'wq', 1); XL(1)
    DMA(('S', 0), 0, 'kv', 0); DMA(('S', 1), 1, 'kv', 1)
    XL(2)
    for s in range(8):
        a.comment(f'==== Q stage {s}')
        WAIT([('W', s), ('X', s)])
        a('s_barrier')
        if s + 2 < 8:
            DMA(('W', s + 2), 2 + (s + 2) % 3, 'wq', s + 2)
        elif s == 7:
            DMA(('S', 2), 2, 'kv', 2)
        slot = s % 3
        xb = V_X + 16 * (s % 3)
        uses = [(u, mt) for u in range(4) for mt in range(4)]
        def rd(i):
            u, mt = uses[i]; fb = V_FR + 4 * (i % NFR)
            for part in range(2):
                a(f'ds_read_b64_tr_b16 v[{fb+2*part}:{fb+2*part+1}], v{V_TR+mt} offset:{slot*SLOTB + (8*u+4*part)*256}')
        for i in range(NFR - 1): rd(i)
        for i in range(16):
            nxt = i + NFR - 1
            if nxt < 16: rd(nxt)
            outstanding = min(nxt, 15) - i
            a(f's_waitcnt lgkmcnt({2*outstanding})')
            u, mt = uses[i]; fb = V_FR + 4 * (i % NFR)
            a(f'v_mfma_f32_32x32x16_bf16 v[{V_ACC+16*mt}:{V_ACC+16*mt+15}], v[{fb}:{fb+3}], v[{xb+4*u}:{xb+4*u+3}], v[{V_ACC+16*mt}:{V_ACC+16*mt+15}]')
        if s + 3 < 8:
            XL(s + 3)
    a('s_nop 15')
    for i in range(64):
        a(f'v_mul_f32 v{V_ACC+i}, s{S_C}, v{V_ACC+i}')
    for p in range(32):
        a(f'v_cvt_pk_bf16_f32 v{V_Q+p}, v{V_ACC+2*p}, v{V_ACC+2*p+1}')
    for i in range(64):
        a(f'v_mov_b32 v{V_ACC+i}, 0')
    for mt in range(4):
        a(f'v_sub_u32 v{V_TR+mt}, v{V_TR+mt}, v0')
    a(f'v_mov_b32 v{V_L}, 0')

    def att_iter(slot, first=False):
        sb = slot * SLOTB
        S = V_S
        uses = [('K', i) for i in range(8)] + [('V', i) for i in range(8)]
        def rd_ops(i):
            kind, n = uses[i]; fb = V_FR + 4 * (i % NFR)
            if kind == 'K':
                if n == 0:
                    return [f'ds_read_b128 v[{fb}:{fb+3}], v{V_KADDR} offset:{sb}'], 1
                return [f'v_xor_b32 v{V_T2}, {16*n}, v{V_KADDR}', f'ds_read_b128 v[{fb}:{fb+3}], v{V_T2} offset:{sb}'], 1
            ks, mt = n // 4, n % 4
            return [f'ds_read_b64_tr_b16 v[{fb+2*part}:{fb+2*part+1}], v{V_TR+mt} offset:{sb + 8192 + (16*ks+8*part)*256}' for part in range(2)], 2
        cnt = [rd_ops(i)[1] for i in range(16)]
        issued = 0
        def issue_upto(n):
            nonlocal issued
            while issued < min(n, 16):
                for op in rd_ops(issued)[0]: a(op)
                issued += 1
        issue_upto(NFR - 1)
        for i in range(8):
            issue_upto(i + NFR)
            a(f's_waitcnt lgkmcnt({sum(cnt[i+1:issued])})')
            fb = V_FR + 4 * (i % NFR)
            c = ('0' if first else f'v[{V_NEGM}:{V_NEGM+15}]') if i == 0 else f'v[{S}:{S+15}]'
            a(f'v_mfma_f32_32x32x16_bf16 v[{S}:{S+15}], v[{fb}:{fb+3}], v[{V_Q+4*i}:{V_Q+4*i+3}], {c}')
        a('s_nop 11')
        a(f'v_max3_f32 v{V_T0}, v{S}, v{S+1}, v{S+2}')
        a(f'v_max3_f32 v{V_T1}, v{S+3}, v{S+4}, v{S+5}')
        a(f'v_max3_f32 v{V_T0}, v{V_T0}, v{S+6}, v{S+7}')
        a(f'v_max3_f32 v{V_T1}, v{V_T1}, v{S+8}, v{S+9}')
        a(f'v_max3_f32 v{V_T0}, v{V_T0}, v{S+10}, v{S+11}')
        a(f'v_max3_f32 v{V_T1}, v{V_T1}, v{S+12}, v{S+13}')
        a(f'v_max3_f32 v{V_T0}, v{V_T0}, v{S+14}, v{S+15}')
        a(f'v_max_f32 v{V_T0}, v{V_T0}, v{V_T1}')
        lab = None
        if not first:
            a(f'v_cmp_lt_f32 vcc, s{S_THR}, v{V_T0}')
            lab = a.newlabel('norescale')
            a(f's_cbranch_vccz {lab}')
        a(f'v_mov_b32 v{V_T1}, v{V_T0}')
        a('s_nop 1')
        a(f'v_permlane32_swap_b32 v{V_T0}, v{V_T1}')
        a(f'v_max_f32 v{V_T0}, v{V_T0}, v{V_T1}')
        if first:
            for i in range(16):
                a(f'v_sub_f32 v{V_NEGM+i}, 0, v{V_T0}')
        else:
            a(f'v_max_f32 v{V_T0}, 0, v{V_T0}')
            a(f'v_sub_f32 v{V_T1}, 0, v{V_T0}')
            a(f'v_exp_f32 v{V_T1}, v{V_T1}')
            for i in range(16):
                a(f'v_sub_f32 v{V_NEGM+i}, v{V_NEGM+i}, v{V_T0}')
            a(f'v_mul_f32 v{V_L}, v{V_L}, v{V_T1}')
            for i in range(64):
                a(f'v_mul_f32 v{V_ACC+i}, v{V_ACC+i}, v{V_T1}')
        for i in range(16):
            a(f'v_sub_f32 v{S+i}, v{S+i}, v{V_T0}')
        if lab: a.label(lab)
        for i in range(16):
            a(f'v_exp_f32 v{S+i}, v{S+i}')
        a('s_nop 0')
        for p in range(8):
            a(f'v_cvt_pk_bf16_f32 v{S+p}, v{S+2*p}, v{S+2*p+1}')
        for p in range(8):
            a(f'v_dot2c_f32_bf16 v{V_L}, s{S_ONES}, v{S+p}')
        for i in range(8, 16):
            issue_upto(i + NFR)
            a(f's_waitcnt lgkmcnt({sum(cnt[i+1:issued])})')
            fb = V_FR + 4 * (i % NFR)
            n = i - 8; ks, mt = n // 4, n % 4
            a(f'v_mfma_f32_32x32x16_bf16 v[{V_ACC+16*mt}:{V_ACC+16*mt+15}], v[{fb}:{fb+3}], v[{S+4*ks}:{S+4*ks+3}], v[{V_ACC+16*mt}:{V_ACC+16*mt+15}]')

    def dma_loop(slot):
        if 'nodma' in EXP: return
        lab = a.newlabel('nodma')
        a(f's_cmp_gt_u32 s{S_W}, 3'); a(f's_cbranch_scc1 {lab}')
        a(f's_add_u32 m0, s{S_M0B}, {slot*SLOTB}')
        a('s_nop 0')
        for i in range(4):
            a(f'buffer_load_dwordx4 v{V_DMA+i}, s[{S_KV}:{S_KV+3}], s{S_T} offen offset:{1024*i}{KVF} lds')
        a.label(lab)
    a('s_waitcnt vmcnt(8)')
    a('s_barrier')
    DMA(('S', 3), 3, 'kv', 3)
    att_iter(0, first=True)
    a(f's_add_u32 s{S_T}, s{S_ROT}, {4*8192}')
    a(f's_and_b32 s{S_T}, s{S_T}, 0x3ffff')
    a(f's_mov_b32 s{S_CNT}, 0')
    a.label('att_loop')
    for k in range(4):
        t = 1 + k
        a('s_waitcnt vmcnt(8)')
        a('s_barrier')
        dma_loop((t + 3) % 4)
        a(f's_add_u32 s{S_T}, s{S_T}, 8192')
        a(f's_and_b32 s{S_T}, s{S_T}, 0x3ffff')
        att_iter(t % 4)
    a(f's_add_u32 s{S_CNT}, s{S_CNT}, 1')
    a(f's_cmp_lt_u32 s{S_CNT}, 7')
    a('s_cbranch_scc1 att_loop')
    for t in range(29, 32):
        a.comment(f'==== att iter {t} (tail)')
        a(f's_waitcnt vmcnt({4*(31-t)})')
        a('s_barrier')
        att_iter(t % 4)
    a('s_nop 15')
    a(f'v_mov_b32 v{V_T1}, v{V_L}')
    a('v_mbcnt_lo_u32_b32 v0, -1, 0')
    a('v_mbcnt_hi_u32_b32 v0, -1, v0')
    a(f'v_permlane32_swap_b32 v{V_L}, v{V_T1}')
    a(f'v_add_f32 v{V_L}, v{V_L}, v{V_T1}')
    a(f'v_rcp_f32 v{V_L}, v{V_L}')
    a('v_and_b32 v16, 31, v0')
    a('v_lshrrev_b32 v17, 5, v0')
    a('v_lshlrev_b32 v18, 12, v17')
    a('v_lshl_add_u32 v18, v16, 4, v18')
    a('s_lshl_b32 s7, s4, 18')
    a('v_add_u32 v18, s7, v18')
    for i in range(64):
        a(f'v_mul_f32 v{V_ACC+i}, v{V_ACC+i}, v{V_L}')
    for p in range(32):
        a(f'v_cvt_pk_bf16_f32 v{V_ACC+p}, v{V_ACC+2*p}, v{V_ACC+2*p+1}')
    for n in range(8):
        hfp, u = n // 4, n % 4
        a(f'buffer_store_dwordx4 v[{V_ACC+4*n}:{V_ACC+4*n+3}], v18, s[{S_O}:{S_O+3}], 0 offen offset:{u*1024 + hfp*512}')
    if 'timing' in EXP:
        a('s_memtime s[84:85]')
        a('s_memrealtime s[86:87]')
        a('s_waitcnt lgkmcnt(0)')
        a('s_sub_u32 s84, s84, s80')
        a('s_sub_u32 s86, s86, s82')
        a('s_mov_b32 s90, 256')
        a('s_mov_b32 s91, 0x00020000')
        a('s_and_b32 s92, s2, 31')
        a('s_lshl_b32 s92, s92, 3')
        a('v_mov_b32 v0, s92')
        a('v_mov_b32 v2, s84')
        a('v_mov_b32 v3, s86')
        a('s_cmp_lt_u32 s2, 32')
        a('s_cbranch_scc0 attn_end')
        a('buffer_store_dwordx2 v[2:3], v0, s[88:91], 0 offen')
    a.label('attn_end')
    a('s_endpgm')
    return NV

OWF = os.environ.get('OWF','')
OBF = os.environ.get('OBF','')
def gen_oproj(a):
    R = int(os.environ.get('OR', '6'))
    NSTG = 32
    V_DMAW = 1
    V_AOFF = 2
    V_TR = 3
    V_OOFF = 5
    V_RED = 6
    V_FR = 8
    V_B = 40
    V_ACC = 136
    NV = 168
    S_W = 4
    S_A = 8; S_WO = 12; S_OUT = 16
    S_M0B = 20; S_SOFF = 21; S_WB = 22; S_G = 23
    SL = 8192
    a.label('oproj_kernel')
    a('s_cmp_ge_u32 s2, 256')
    a('s_cbranch_scc1 oproj_end')
    a('s_load_dwordx2 s[40:41], s[0:1], 32')
    a('s_load_dwordx2 s[42:43], s[0:1], 72')
    a('s_load_dwordx2 s[44:45], s[0:1], 80')
    a('s_load_dwordx2 s[46:47], s[0:1], 96')
    a('v_lshrrev_b32 v1, 6, v0')
    a('v_and_b32 v0, 63, v0')
    a('s_bfe_u32 s3, s2, 0x10002')
    a('v_readfirstlane_b32 s4, v1')
    a('s_and_b32 s5, s2, 3')
    a('s_lshl_b32 s5, s5, 2')
    a('s_bfe_u32 s6, s2, 0x20003')
    a('s_add_u32 s5, s5, s6')
    a('s_lshr_b32 s6, s2, 5')
    a('s_cmp_ge_u32 s4, 5')
    a(f's_cselect_b32 s{S_G}, 1, 0')
    a(f's_mul_i32 s7, s{S_G}, 5')
    a('s_sub_u32 s4, s4, s7')
    a('s_waitcnt lgkmcnt(0)')
    a('s_cmp_eq_u32 s3, 0')
    a('s_cselect_b64 s[40:41], s[40:41], s[42:43]')
    a('s_mul_i32 s7, s3, 20971520')
    a('s_mul_i32 s34, s5, 1310720')
    a('s_add_u32 s7, s7, s34')
    a(f's_lshl_b32 s36, s{S_G}, 17')
    a('s_add_u32 s7, s7, s36')
    a(f's_add_u32 s{S_A}, s46, s7')
    a(f's_addc_u32 s{S_A+1}, s47, 0')
    a(f's_sub_u32 s{S_A+2}, 1310720, s36')
    a(f's_mov_b32 s{S_A+3}, 0x00020000')
    a('s_lshl_b32 s7, s6, 7')
    a(f's_lshl_b32 s36, s{S_G}, 21')
    a('s_add_u32 s36, s36, s7')
    a(f's_add_u32 s{S_WO}, s40, s36')
    a(f's_addc_u32 s{S_WO+1}, s41, 0')
    a(f's_sub_u32 s{S_WO+2}, 4194304, s36')
    a(f's_mov_b32 s{S_WO+3}, 0x00020000')
    a('s_mul_i32 s34, s5, 327680')
    a('s_lshl_b32 s35, s3, 10')
    a('s_add_u32 s35, s35, s7')
    a('s_add_u32 s34, s34, s35')
    a(f's_add_u32 s{S_OUT}, s44, s34')
    a(f's_addc_u32 s{S_OUT+1}, s45, 0')
    a(f's_sub_u32 s{S_OUT+2}, 327680, s35')
    a(f's_mov_b32 s{S_OUT+3}, 0x00020000')
    a(f's_mul_i32 s37, s{S_G}, {R*SL}')
    a(f's_lshl_b32 s{S_M0B}, s4, 11')
    a(f's_add_u32 s{S_M0B}, s{S_M0B}, s37')
    a(f's_lshl_b32 s{S_WB}, s4, 14')
    a('v_lshrrev_b32 v16, 3, v0')
    a('v_and_b32 v17, 7, v0')
    a('v_bfe_u32 v18, v16, 1, 1')
    a('v_lshlrev_b32 v18, 1, v18')
    a('v_xor_b32 v18, v17, v18')
    a('v_lshlrev_b32 v18, 4, v18')
    a(f'v_lshl_add_u32 v{V_DMAW}, v16, 10, v18')
    a('v_and_b32 v16, 31, v0')
    a('v_lshrrev_b32 v17, 5, v0')
    a('v_lshlrev_b32 v18, 6, v17')
    a(f'v_lshlrev_b32 v{V_AOFF}, 4, v0')
    a(f'v_lshl_add_u32 v{V_OOFF}, v16, 11, v18')
    a('s_lshl_b32 s7, s4, 18')
    a(f'v_add_u32 v{V_AOFF}, s7, v{V_AOFF}')
    a('s_lshl_b32 s7, s4, 16')
    a(f'v_add_u32 v{V_OOFF}, s7, v{V_OOFF}')
    a('s_lshl_b32 s7, s4, 13')
    a(f'v_lshlrev_b32 v{V_RED}, 4, v0')
    a(f'v_add_u32 v{V_RED}, s7, v{V_RED}')
    a('v_bfe_u32 v18, v0, 2, 2')
    a('v_and_b32 v19, 3, v0')
    a('v_bfe_u32 v20, v0, 4, 1')
    a('v_and_b32 v21, 1, v19')
    a('v_lshlrev_b32 v21, 6, v21')
    a('v_lshl_add_u32 v21, v20, 4, v21')
    a('v_lshrrev_b32 v22, 1, v19')
    a('v_lshl_add_u32 v21, v22, 3, v21')
    a('v_lshl_add_u32 v21, v18, 7, v21')
    a('v_lshl_add_u32 v21, v17, 12, v21')
    a('v_add_u32 v21, s37, v21')
    a('v_lshrrev_b32 v18, 1, v18')
    for mt in range(2):
        a(f'v_xor_b32 v22, {mt}, v18')
        a(f'v_lshl_add_u32 v{V_TR+mt}, v22, 5, v21')
    for i in range(32):
        a(f'v_mov_b32 v{V_ACC+i}, 0')
    QL = []; QN = []
    def issue(st):
        slot = st % R
        lab = a.newlabel('nodma')
        a(f's_cmp_gt_u32 s{S_W}, 3')
        a(f's_cbranch_scc1 {lab}')
        a(f's_add_u32 m0, s{S_M0B}, {slot*SL}')
        a(f's_add_u32 s{S_SOFF}, s{S_WB}, {st*65536}')
        if 'onodma' not in EXP:
            a(f'buffer_load_dwordx4 v{V_DMAW}, s[{S_WO}:{S_WO+3}], s{S_SOFF} offen{OWF} lds')
            a(f's_add_u32 s{S_SOFF}, s{S_SOFF}, 7168')
            a(f'buffer_load_dwordx4 v{V_DMAW}, s[{S_WO}:{S_WO+3}], s{S_SOFF} offen offset:1024{OWF} lds')
        a.label(lab)
        a(f's_mov_b32 s{S_SOFF}, {4096*st}')
        for u in range(4 if 'onob' not in EXP else 0):
            a(f'buffer_load_dwordx4 v[{V_B+16*slot+4*u}:{V_B+16*slot+4*u+3}], v{V_AOFF}, s[{S_A}:{S_A+3}], s{S_SOFF} offen offset:{1024*u}{OBF}')
        QL.extend([st] * 6); QN.extend([st] * 4)
    def WAIT(st):
        ns = []
        for q in (QL, QN):
            last = max(i for i, t in enumerate(q) if t == st)
            ns.append(len(q) - 1 - last); del q[:last + 1]
        if ns[0] == ns[1]:
            a(f's_waitcnt vmcnt({ns[0]})'); return
        l1 = a.newlabel('w4'); l2 = a.newlabel('wj')
        a(f's_cmp_gt_u32 s{S_W}, 3')
        a(f's_cbranch_scc1 {l1}')
        a(f's_waitcnt vmcnt({ns[0]})')
        a(f's_branch {l2}')
        a.label(l1)
        a(f's_waitcnt vmcnt({ns[1]})')
        a.label(l2)
    for st in range(R - 1):
        issue(st)
    for st in range(NSTG):
        slot = st % R
        WAIT(st)
        a('s_barrier')
        if st + R - 1 < NSTG:
            issue(st + R - 1)
        for u in range(4):
            fb = V_FR + 8 * u
            for mt in range(2):
                for part in range(2):
                    a(f'ds_read_b64_tr_b16 v[{fb+4*mt+2*part}:{fb+4*mt+2*part+1}], v{V_TR+mt} offset:{slot*SL + (8*u+4*part)*128}')
        for u in range(4):
            a(f's_waitcnt lgkmcnt({4*(3-u)})')
            fb = V_FR + 8 * u
            for mt in range(2):
                a(f'v_mfma_f32_32x32x16_bf16 v[{V_ACC+16*mt}:{V_ACC+16*mt+15}], v[{fb+4*mt}:{fb+4*mt+3}], v[{V_B+16*slot+4*u}:{V_B+16*slot+4*u+3}], v[{V_ACC+16*mt}:{V_ACC+16*mt+15}]')
    a('s_nop 15')
    a('s_barrier')
    a(f's_cmp_eq_u32 s{S_G}, 0')
    a('s_cbranch_scc1 op_g0')
    for n in range(8):
        a(f'ds_write_b128 v{V_RED}, v[{V_ACC+4*n}:{V_ACC+4*n+3}] offset:{1024*n}')
    a('s_waitcnt lgkmcnt(0)')
    a('s_barrier')
    a('s_endpgm')
    a.label('op_g0')
    a('s_barrier')
    for n in range(8):
        a(f'ds_read_b128 v[{V_B+4*n}:{V_B+4*n+3}], v{V_RED} offset:{1024*n}')
    a('s_waitcnt lgkmcnt(0)')
    for i in range(32):
        a(f'v_add_f32 v{V_ACC+i}, v{V_ACC+i}, v{V_B+i}')
    for p in range(16):
        a(f'v_cvt_pk_bf16_f32 v{V_ACC+p}, v{V_ACC+2*p}, v{V_ACC+2*p+1}')
    for n in range(4):
        a(f'buffer_store_dwordx4 v[{V_ACC+4*n}:{V_ACC+4*n+3}], v{V_OOFF}, s[{S_OUT}:{S_OUT+3}], 0 offen offset:{16*n}')
    a.label('oproj_end')
    a('s_endpgm')
    return NV

def kd(name, nv):
    return f""".section .rodata,"a"
.p2align 6
.amdhsa_kernel {name}
  .amdhsa_next_free_vgpr {nv}
  .amdhsa_next_free_sgpr 96
  .amdhsa_accum_offset {(nv+3)//4*4}
  .amdhsa_group_segment_fixed_size 0
  .amdhsa_kernarg_size 104
  .amdhsa_user_sgpr_count 2
  .amdhsa_user_sgpr_kernarg_segment_ptr 1
  .amdhsa_system_sgpr_workgroup_id_x 1
.end_amdhsa_kernel
"""

def main():
    out = HEADER
    out += '; @launch kernel=attn_kernel grid=(512,1,1) block=(640,1,1) lds=163840\n'
    out += '; @launch kernel=oproj_kernel grid=(256,1,1) block=(640,1,1) lds=98304\n'
    out += '.amdgcn_target "amdgcn-amd-amdhsa--gfx950"\n.text\n'
    a = Asm()
    nv1 = gen_attn(a)
    out += '.globl attn_kernel\n.p2align 8\n.type attn_kernel,@function\n' + a.text()
    a = Asm(); a.lbl = 10000
    nv2 = gen_oproj(a)
    out += '.globl oproj_kernel\n.p2align 8\n.type oproj_kernel,@function\n' + a.text()
    out += kd('attn_kernel', nv1) + kd('oproj_kernel', nv2)
    open(sys.argv[1] if len(sys.argv) > 1 else 'concat_heads__mha_block_cached__gqa_block_cached__near_ridge.s', 'w').write(out)

main()
```

```python
import sys, os
EXP = os.environ.get('EXP','')

HEADER = open('concat_heads__mha_block_cached__gqa_block_cached__near_ridge.s.ref').read().split('; Override launch')[0]

class Asm:
    def __init__(self):
        self.lines = []
        self.lbl = 0
    def __call__(self, s):
        if 'nolds' in EXP and s.startswith('ds_read'): return
        if 'nobar' in EXP and s.startswith('s_barrier'): return
        if 'nomfma' in EXP and s.startswith('v_mfma'): return
        self.lines.append('    ' + s)
    def label(self, name):
        self.lines.append(name + ':')
    def newlabel(self, p='L'):
        self.lbl += 1
        return f'{p}_{self.lbl}'
    def comment(self, s):
        self.lines.append('    ; ' + s)
    def text(self):
        return '\n'.join(self.lines) + '\n'

def vr(base, n=1):
    return f'v{base}' if n == 1 else f'v[{base}:{base+n-1}]'
def sr(base, n=1):
    return f's{base}' if n == 1 else f's[{base}:{base+n-1}]'

NSLOT = 4
SLOTB = 16384
SCALE_LOG2E = (128 ** -0.5) * 1.4426950408889634
THR_RAW = 8.0 / SCALE_LOG2E

import struct
def f32hex(x):
    return '0x%08x' % struct.unpack('<I', struct.pack('<f', x))[0]

KVF = ' nt'
for f in ('sc0','sc1','nt'):
    if 'kv'+f in EXP: KVF += ' '+f
def gen_attn(a):
    V_DMA = 1; V_TR = 5; V_KADDR = 9; V_L = 11; V_T0 = 13; V_T1 = 14; V_T2 = 15
    V_DMAW = 13; V_XOFF = 14
    V_FR = 16; NFR = 6
    V_S = 40; V_NEGM = 56; V_Q = 72; V_X = 40; V_ACC = 104
    NV = 168
    S_W = 4; S_X = 8; S_WQ = 12; S_KV = 16; S_O = 20
    S_M0B = 24; S_SOFF = 25; S_T = 26; S_CNT = 27; S_C = 28; S_THR = 29; S_WQB = 30; S_KVB = 31; S_ROT = 33
    S_ONES = 37
    P = 40
    a.label('attn_kernel')
    a('s_cmp_ge_u32 s2, 512')
    a('s_cbranch_scc1 attn_end')
    a(f's_load_dwordx16 s[{P}:{P+15}], s[0:1], 0')
    a(f's_load_dwordx4 s[{P+16}:{P+19}], s[0:1], 64')
    a(f's_load_dwordx2 s[{P+20}:{P+21}], s[0:1], 96')
    if 'timing' in EXP:
        a('s_memtime s[80:81]')
        a('s_memrealtime s[82:83]')
        a('s_load_dwordx2 s[88:89], s[0:1], 88')
    a('v_lshrrev_b32 v1, 6, v0')
    a('v_and_b32 v0, 63, v0')
    a('s_nop 0')
    a('v_readfirstlane_b32 s4, v1')
    a('s_nop 3')
    a('s_mov_b32 s38, s2')
    a('s_mov_b32 s39, s4')
    a('s_lshl_b32 s2, s2, 1')
    a('s_cmp_ge_u32 s4, 5')
    a('s_cselect_b32 s35, 1, 0')
    a('s_add_u32 s2, s2, s35')
    a('s_mul_i32 s7, s35, 5')
    a('s_sub_u32 s4, s4, s7')
    a('s_mul_i32 s35, s35, 81920')
    a('s_lshr_b32 s3, s2, 9')
    a('s_lshr_b32 s5, s2, 5')
    a('s_and_b32 s5, s5, 15')
    a('s_and_b32 s6, s2, 31')
    a('s_waitcnt lgkmcnt(0)')
    a('s_cmp_eq_u32 s3, 0')
    a(f's_cselect_b64 s[64:65], s[{P}:{P+1}], s[{P+10}:{P+11}]')
    a(f's_cselect_b64 s[66:67], s[{P+2}:{P+3}], s[{P+12}:{P+13}]')
    a(f's_cselect_b64 s[68:69], s[{P+4}:{P+5}], s[{P+14}:{P+15}]')
    a(f's_cselect_b64 s[70:71], s[{P+6}:{P+7}], s[{P+16}:{P+17}]')
    a('s_cmp_lt_u32 s4, 2')
    a('s_cselect_b64 s[66:67], s[66:67], s[68:69]')
    a('s_mul_i32 s7, s5, 163840')
    a(f's_add_u32 s{S_X}, s64, s7')
    a(f's_addc_u32 s{S_X+1}, s65, 0')
    a(f's_mov_b32 s{S_X+2}, 163840')
    a(f's_mov_b32 s{S_X+3}, 0x00020000')
    a('s_lshl_b32 s7, s6, 8')
    a(f's_add_u32 s{S_WQ}, s70, s7')
    a(f's_addc_u32 s{S_WQ+1}, s71, 0')
    a(f's_sub_u32 s{S_WQ+2}, 4194304, s7')
    a(f's_mov_b32 s{S_WQ+3}, 0x00020000')
    a('s_and_b32 s7, s2, 511')
    a('s_lshl_b32 s7, s7, 18')
    a(f's_add_u32 s{S_KV}, s66, s7')
    a(f's_addc_u32 s{S_KV+1}, s67, 0')
    a(f's_mov_b32 s{S_KV+2}, 262144')
    a(f's_mov_b32 s{S_KV+3}, 0x00020000')
    a('s_mul_i32 s7, s3, 20971520')
    a('s_mul_i32 s34, s5, 1310720')
    a('s_add_u32 s7, s7, s34')
    a('s_lshl_b32 s34, s6, 13')
    a('s_add_u32 s7, s7, s34')
    a(f's_add_u32 s{S_O}, s{P+20}, s7')
    a(f's_addc_u32 s{S_O+1}, s{P+21}, 0')
    a(f's_sub_u32 s{S_O+2}, 1310720, s34')
    a(f's_mov_b32 s{S_O+3}, 0x00020000')
    a(f's_lshl_b32 s{S_M0B}, s4, 12')
    a(f's_add_u32 s{S_M0B}, s{S_M0B}, s35')
    a(f's_lshl_b32 s{S_WQB}, s4, 17')
    a(f's_and_b32 s{S_KVB}, s4, 1')
    a(f's_lshl_b32 s{S_KVB}, s{S_KVB}, 12')
    a(f's_lshr_b32 s{S_ROT}, s2, 5')
    a(f's_xor_b32 s{S_ROT}, s{S_ROT}, s2')
    a(f's_and_b32 s{S_ROT}, s{S_ROT}, 31')
    a(f's_lshl_b32 s{S_ROT}, s{S_ROT}, 13')
    a(f's_add_u32 s{S_ROT}, s{S_ROT}, s{S_KVB}')
    a(f's_mov_b32 s{S_C}, {f32hex(SCALE_LOG2E)}')
    a(f's_mov_b32 s{S_THR}, {f32hex(8.0)}')
    a(f's_mov_b32 s{S_ONES}, 0x3f803f80')
    a('v_lshrrev_b32 v16, 4, v0')
    a('v_and_b32 v17, 15, v0')
    a('v_lshlrev_b32 v18, 1, v16')
    a('v_xor_b32 v18, v17, v18')
    a('v_lshlrev_b32 v18, 4, v18')
    a(f'v_lshl_add_u32 v{V_DMAW}, v16, 13, v18')
    a('v_lshl_add_u32 v19, v16, 8, v18')
    a('v_xor_b32 v20, v17, v16')
    a('s_cmp_lt_u32 s4, 2')
    a('s_cselect_b64 vcc, -1, 0')
    for i in range(4):
        a(f'v_xor_b32 v21, {4*i}, v20')
        a('v_lshlrev_b32 v21, 4, v21')
        a('v_lshl_add_u32 v21, v16, 8, v21')
        a(f'v_cndmask_b32 v{V_DMA+i}, v19, v21, vcc')
    a('v_and_b32 v16, 31, v0')
    a('v_lshrrev_b32 v17, 5, v0')
    a('v_lshlrev_b32 v18, 6, v17')
    a(f'v_lshl_add_u32 v{V_XOFF}, v16, 10, v18')
    a(f's_lshl_b32 s7, s4, 15')
    a(f'v_add_u32 v{V_XOFF}, s7, v{V_XOFF}')
    a('v_and_b32 v18, 15, v16')
    a('v_lshlrev_b32 v19, 3, v17')
    a('v_xor_b32 v18, v18, v19')
    a('v_lshlrev_b32 v18, 4, v18')
    a(f'v_lshl_add_u32 v{V_KADDR}, v16, 8, v18')
    a(f'v_add_u32 v{V_KADDR}, s35, v{V_KADDR}')
    a('v_bfe_u32 v18, v0, 2, 2')
    a('v_and_b32 v19, 3, v0')
    a('v_bfe_u32 v20, v0, 4, 1')
    a('v_and_b32 v21, 1, v19')
    a('v_lshlrev_b32 v21, 7, v21')
    a('v_lshl_add_u32 v21, v20, 4, v21')
    a('v_lshrrev_b32 v22, 1, v19')
    a('v_lshl_add_u32 v21, v22, 3, v21')
    a('v_lshl_add_u32 v21, v18, 8, v21')
    a('v_lshl_add_u32 v21, v17, 13, v21')
    a('v_add_u32 v21, s35, v21')
    a('v_add_u32 v21, 32768, v21')
    for mt in range(4):
        a(f'v_xor_b32 v22, {mt}, v18')
        a(f'v_lshl_add_u32 v{V_TR+mt}, v22, 5, v21')
    a('v_mul_u32_u24 v0, 7168, v17')
    a('v_add_u32 v0, 32768, v0')
    for i in range(64):
        a(f'v_mov_b32 v{V_ACC+i}, 0')

    CL = ('L', 'N')
    Q = {c: [] for c in CL}
    def DMA(tag, slot, mode, imm):
        if 'nodma' in EXP: return
        lab = a.newlabel('nodma')
        a(f's_cmp_gt_u32 s{S_W}, 3'); a(f's_cbranch_scc1 {lab}')
        a(f's_add_u32 m0, s{S_M0B}, {slot*SLOTB}')
        if mode == 'wq':
            a(f's_add_u32 s{S_SOFF}, s{S_WQB}, {imm*524288}')
            for i in range(4):
                a(f'buffer_load_dwordx4 v{V_DMAW}, s[{S_WQ}:{S_WQ+3}], s{S_SOFF} offen offset:{1024*i} lds')
                if i < 3: a(f's_add_u32 s{S_SOFF}, s{S_SOFF}, 31744')
        else:
            a(f's_add_u32 s{S_SOFF}, s{S_ROT}, {(imm*8192) & 0x3ffff}')
            a(f's_and_b32 s{S_SOFF}, s{S_SOFF}, 0x3ffff')
            for i in range(4):
                a(f'buffer_load_dwordx4 v{V_DMA+i}, s[{S_KV}:{S_KV+3}], s{S_SOFF} offen offset:{1024*i}{KVF} lds')
        a.label(lab)
        Q['L'].extend([tag] * 4)
    def XL(stage):
        base = V_X + 16 * (stage % 3)
        for u in range(4):
            a(f'buffer_load_dwordx4 v[{base+4*u}:{base+4*u+3}], v{V_XOFF}, s[{S_X}:{S_X+3}], 0 offen offset:{128*stage+16*u}')
        for c in CL: Q[c].extend([('X', stage)] * 4)
    def WAIT(tags):
        ns = {}
        for c in CL:
            q = Q[c]; last = -1
            for i, t in enumerate(q):
                if t in tags: last = i
            ns[c] = min(len(q) - 1 - last, 63)
            del q[:last + 1]
        if len(set(ns.values())) == 1:
            a(f's_waitcnt vmcnt({ns["L"]})'); return
        lN = a.newlabel('wn'); lj = a.newlabel('wj')
        a(f's_cmp_gt_u32 s{S_W}, 3'); a(f's_cbranch_scc1 {lN}')
        a(f's_waitcnt vmcnt({ns["L"]})'); a(f's_branch {lj}')
        a.label(lN); a(f's_waitcnt vmcnt({ns["N"]})')
        a.label(lj)
    DMA(('W', 0), 2, 'wq', 0); XL(0); DMA(('W', 1), 3, 'wq', 1); XL(1)
    DMA(('S', 0), 0, 'kv', 0); DMA(('S', 1), 1, 'kv', 1)
    XL(2)
    if 'nowopf' not in EXP:
        a('s_cmp_lt_u32 s38, 256')
        a(f's_cselect_b64 s[72:73], s[{P+8}:{P+9}], s[{P+18}:{P+19}]')
        a('s_mov_b32 s74, 4194304')
        a('s_mov_b32 s75, 0x00020000')
        a('s_and_b32 s76, s38, 255')
        a('s_lshl_b32 s76, s76, 14')
        a('s_min_u32 s77, s39, 7')
        a('s_lshl_b32 s77, s77, 11')
        a('s_add_u32 s76, s76, s77')
        a('v_mbcnt_lo_u32_b32 v88, -1, 0')
        a('v_mbcnt_hi_u32_b32 v88, -1, v88')
        a('v_lshlrev_b32 v88, 4, v88')
        a('buffer_load_dwordx4 v[92:95], v88, s[72:75], s76 offen')
        a('buffer_load_dwordx4 v[96:99], v88, s[72:75], s76 offen offset:1024')
        for c in CL: Q[c].extend([('P',)] * 2)
    for s in range(8):
        a.comment(f'==== Q stage {s}')
        WAIT([('W', s), ('X', s)])
        a('s_barrier')
        if s + 2 < 8:
            DMA(('W', s + 2), 2 + (s + 2) % 3, 'wq', s + 2)
        elif s == 7:
            DMA(('S', 2), 2, 'kv', 2)
        slot = s % 3
        xb = V_X + 16 * (s % 3)
        uses = [(u, mt) for u in range(4) for mt in range(4)]
        def rd(i):
            u, mt = uses[i]; fb = V_FR + 4 * (i % NFR)
            for part in range(2):
                a(f'ds_read_b64_tr_b16 v[{fb+2*part}:{fb+2*part+1}], v{V_TR+mt} offset:{slot*SLOTB + (8*u+4*part)*256}')
        for i in range(NFR - 1): rd(i)
        for i in range(16):
            nxt = i + NFR - 1
            if nxt < 16: rd(nxt)
            outstanding = min(nxt, 15) - i
            a(f's_waitcnt lgkmcnt({2*outstanding})')
            u, mt = uses[i]; fb = V_FR + 4 * (i % NFR)
            a(f'v_mfma_f32_32x32x16_bf16 v[{V_ACC+16*mt}:{V_ACC+16*mt+15}], v[{fb}:{fb+3}], v[{xb+4*u}:{xb+4*u+3}], v[{V_ACC+16*mt}:{V_ACC+16*mt+15}]')
        if s + 3 < 8:
            XL(s + 3)
    a('s_nop 15')
    for i in range(64):
        a(f'v_mul_f32 v{V_ACC+i}, s{S_C}, v{V_ACC+i}')
    for p in range(32):
        a(f'v_cvt_pk_bf16_f32 v{V_Q+p}, v{V_ACC+2*p}, v{V_ACC+2*p+1}')
    for i in range(64):
        a(f'v_mov_b32 v{V_ACC+i}, 0')
    for mt in range(4):
        a(f'v_sub_u32 v{V_TR+mt}, v{V_TR+mt}, v0')
    a(f'v_mov_b32 v{V_L}, 0')

    def att_iter(slot, first=False):
        sb = slot * SLOTB
        S = V_S
        uses = [('K', i) for i in range(8)] + [('V', i) for i in range(8)]
        def rd_ops(i):
            kind, n = uses[i]; fb = V_FR + 4 * (i % NFR)
            if kind == 'K':
                if n == 0:
                    return [f'ds_read_b128 v[{fb}:{fb+3}], v{V_KADDR} offset:{sb}'], 1
                return [f'v_xor_b32 v{V_T2}, {16*n}, v{V_KADDR}', f'ds_read_b128 v[{fb}:{fb+3}], v{V_T2} offset:{sb}'], 1
            ks, mt = n // 4, n % 4
            return [f'ds_read_b64_tr_b16 v[{fb+2*part}:{fb+2*part+1}], v{V_TR+mt} offset:{sb + 8192 + (16*ks+8*part)*256}' for part in range(2)], 2
        cnt = [rd_ops(i)[1] for i in range(16)]
        issued = 0
        def issue_upto(n):
            nonlocal issued
            while issued < min(n, 16):
                for op in rd_ops(issued)[0]: a(op)
                issued += 1
        issue_upto(NFR - 1)
        for i in range(8):
            issue_upto(i + NFR)
            a(f's_waitcnt lgkmcnt({sum(cnt[i+1:issued])})')
            fb = V_FR + 4 * (i % NFR)
            c = ('0' if first else f'v[{V_NEGM}:{V_NEGM+15}]') if i == 0 else f'v[{S}:{S+15}]'
            a(f'v_mfma_f32_32x32x16_bf16 v[{S}:{S+15}], v[{fb}:{fb+3}], v[{V_Q+4*i}:{V_Q+4*i+3}], {c}')
        a('s_nop 11')
        a(f'v_max3_f32 v{V_T0}, v{S}, v{S+1}, v{S+2}')
        a(f'v_max3_f32 v{V_T1}, v{S+3}, v{S+4}, v{S+5}')
        a(f'v_max3_f32 v{V_T0}, v{V_T0}, v{S+6}, v{S+7}')
        a(f'v_max3_f32 v{V_T1}, v{V_T1}, v{S+8}, v{S+9}')
        a(f'v_max3_f32 v{V_T0}, v{V_T0}, v{S+10}, v{S+11}')
        a(f'v_max3_f32 v{V_T1}, v{V_T1}, v{S+12}, v{S+13}')
        a(f'v_max3_f32 v{V_T0}, v{V_T0}, v{S+14}, v{S+15}')
        a(f'v_max_f32 v{V_T0}, v{V_T0}, v{V_T1}')
        lab = None
        if not first:
            a(f'v_cmp_lt_f32 vcc, s{S_THR}, v{V_T0}')
            lab = a.newlabel('norescale')
            a(f's_cbranch_vccz {lab}')
        a(f'v_mov_b32 v{V_T1}, v{V_T0}')
        a('s_nop 1')
        a(f'v_permlane32_swap_b32 v{V_T0}, v{V_T1}')
        a(f'v_max_f32 v{V_T0}, v{V_T0}, v{V_T1}')
        if first:
            for i in range(16):
                a(f'v_sub_f32 v{V_NEGM+i}, 0, v{V_T0}')
        else:
            a(f'v_max_f32 v{V_T0}, 0, v{V_T0}')
            a(f'v_sub_f32 v{V_T1}, 0, v{V_T0}')
            a(f'v_exp_f32 v{V_T1}, v{V_T1}')
            for i in range(16):
                a(f'v_sub_f32 v{V_NEGM+i}, v{V_NEGM+i}, v{V_T0}')
            a(f'v_mul_f32 v{V_L}, v{V_L}, v{V_T1}')
            for i in range(64):
                a(f'v_mul_f32 v{V_ACC+i}, v{V_ACC+i}, v{V_T1}')
        for i in range(16):
            a(f'v_sub_f32 v{S+i}, v{S+i}, v{V_T0}')
        if lab: a.label(lab)
        for i in range(16):
            a(f'v_exp_f32 v{S+i}, v{S+i}')
        a('s_nop 0')
        for p in range(8):
            a(f'v_cvt_pk_bf16_f32 v{S+p}, v{S+2*p}, v{S+2*p+1}')
        for p in range(8):
            a(f'v_dot2c_f32_bf16 v{V_L}, s{S_ONES}, v{S+p}')
        for i in range(8, 16):
            issue_upto(i + NFR)
            a(f's_waitcnt lgkmcnt({sum(cnt[i+1:issued])})')
            fb = V_FR + 4 * (i % NFR)
            n = i - 8; ks, mt = n // 4, n % 4
            a(f'v_mfma_f32_32x32x16_bf16 v[{V_ACC+16*mt}:{V_ACC+16*mt+15}], v[{fb}:{fb+3}], v[{S+4*ks}:{S+4*ks+3}], v[{V_ACC+16*mt}:{V_ACC+16*mt+15}]')

    def dma_loop(slot):
        if 'nodma' in EXP: return
        lab = a.newlabel('nodma')
        a(f's_cmp_gt_u32 s{S_W}, 3'); a(f's_cbranch_scc1 {lab}')
        a(f's_add_u32 m0, s{S_M0B}, {slot*SLOTB}')
        a('s_nop 0')
        for i in range(4):
            a(f'buffer_load_dwordx4 v{V_DMA+i}, s[{S_KV}:{S_KV+3}], s{S_T} offen offset:{1024*i}{KVF} lds')
        a.label(lab)
    a('s_waitcnt vmcnt(8)')
    a('s_barrier')
    DMA(('S', 3), 3, 'kv', 3)
    att_iter(0, first=True)
    a(f's_add_u32 s{S_T}, s{S_ROT}, {4*8192}')
    a(f's_and_b32 s{S_T}, s{S_T}, 0x3ffff')
    a(f's_mov_b32 s{S_CNT}, 0')
    a.label('att_loop')
    for k in range(4):
        t = 1 + k
        a('s_waitcnt vmcnt(8)')
        a('s_barrier')
        dma_loop((t + 3) % 4)
        a(f's_add_u32 s{S_T}, s{S_T}, 8192')
        a(f's_and_b32 s{S_T}, s{S_T}, 0x3ffff')
        att_iter(t % 4)
    a(f's_add_u32 s{S_CNT}, s{S_CNT}, 1')
    a(f's_cmp_lt_u32 s{S_CNT}, 7')
    a('s_cbranch_scc1 att_loop')
    for t in range(29, 32):
        a.comment(f'==== att iter {t} (tail)')
        a(f's_waitcnt vmcnt({4*(31-t)})')
        a('s_barrier')
        att_iter(t % 4)
    a('s_nop 15')
    a(f'v_mov_b32 v{V_T1}, v{V_L}')
    a('v_mbcnt_lo_u32_b32 v0, -1, 0')
    a('v_mbcnt_hi_u32_b32 v0, -1, v0')
    a(f'v_permlane32_swap_b32 v{V_L}, v{V_T1}')
    a(f'v_add_f32 v{V_L}, v{V_L}, v{V_T1}')
    a(f'v_rcp_f32 v{V_L}, v{V_L}')
    a('v_and_b32 v16, 31, v0')
    a('v_lshrrev_b32 v17, 5, v0')
    a('v_lshlrev_b32 v18, 12, v17')
    a('v_lshl_add_u32 v18, v16, 4, v18')
    a('s_lshl_b32 s7, s4, 18')
    a('v_add_u32 v18, s7, v18')
    for i in range(64):
        a(f'v_mul_f32 v{V_ACC+i}, v{V_ACC+i}, v{V_L}')
    for p in range(32):
        a(f'v_cvt_pk_bf16_f32 v{V_ACC+p}, v{V_ACC+2*p}, v{V_ACC+2*p+1}')
    for n in range(8):
        hfp, u = n // 4, n % 4
        a(f'buffer_store_dwordx4 v[{V_ACC+4*n}:{V_ACC+4*n+3}], v18, s[{S_O}:{S_O+3}], 0 offen offset:{u*1024 + hfp*512}')
    if 'timing' in EXP:
        a('s_memtime s[84:85]')
        a('s_memrealtime s[86:87]')
        a('s_waitcnt lgkmcnt(0)')
        a('s_sub_u32 s84, s84, s80')
        a('s_sub_u32 s86, s86, s82')
        a('s_mov_b32 s90, 256')
        a('s_mov_b32 s91, 0x00020000')
        a('s_and_b32 s92, s2, 31')
        a('s_lshl_b32 s92, s92, 3')
        a('v_mov_b32 v0, s92')
        a('v_mov_b32 v2, s84')
        a('v_mov_b32 v3, s86')
        a('s_cmp_lt_u32 s2, 32')
        a('s_cbranch_scc0 attn_end')
        a('buffer_store_dwordx2 v[2:3], v0, s[88:91], 0 offen')
    a.label('attn_end')
    a('s_endpgm')
    return NV

OWF = os.environ.get('OWF','')
OBF = os.environ.get('OBF','')
def gen_oproj(a):
    R = int(os.environ.get('OR', '6'))
    NSTG = 32
    V_DMAW = 1
    V_AOFF = 2
    V_TR = 3
    V_OOFF = 5
    V_RED = 6
    V_FR = 8
    V_B = 40
    V_ACC = 136
    NV = 168
    S_W = 4
    S_A = 8; S_WO = 12; S_OUT = 16
    S_M0B = 20; S_SOFF = 21; S_WB = 22; S_G = 23
    SL = 8192
    a.label('oproj_kernel')
    a('s_cmp_ge_u32 s2, 256')
    a('s_cbranch_scc1 oproj_end')
    a('s_load_dwordx2 s[40:41], s[0:1], 32')
    a('s_load_dwordx2 s[42:43], s[0:1], 72')
    a('s_load_dwordx2 s[44:45], s[0:1], 80')
    a('s_load_dwordx2 s[46:47], s[0:1], 96')
    if 'xcc' in EXP:
        a('s_load_dwordx2 s[88:89], s[0:1], 88')
        a('s_getreg_b32 s84, hwreg(HW_REG_XCC_ID)')
        a('s_waitcnt lgkmcnt(0)')
        a('s_mov_b32 s90, 256')
        a('s_mov_b32 s91, 0x00020000')
        a('s_lshl_b32 s92, s2, 2')
        a('v_mov_b32 v2, s92')
        a('v_mov_b32 v3, s84')
        a('buffer_store_dword v3, v2, s[88:91], 0 offen')
    a('v_lshrrev_b32 v1, 6, v0')
    a('v_and_b32 v0, 63, v0')
    a('s_bfe_u32 s3, s2, 0x10002')
    a('v_readfirstlane_b32 s4, v1')
    a('s_and_b32 s5, s2, 3')
    a('s_lshl_b32 s5, s5, 2')
    a('s_bfe_u32 s6, s2, 0x20003')
    a('s_add_u32 s5, s5, s6')
    a('s_lshr_b32 s6, s2, 5')
    a('s_cmp_ge_u32 s4, 5')
    a(f's_cselect_b32 s{S_G}, 1, 0')
    a(f's_mul_i32 s7, s{S_G}, 5')
    a('s_sub_u32 s4, s4, s7')
    a('s_waitcnt lgkmcnt(0)')
    a('s_cmp_eq_u32 s3, 0')
    a('s_cselect_b64 s[40:41], s[40:41], s[42:43]')
    a('s_mul_i32 s7, s3, 20971520')
    a('s_mul_i32 s34, s5, 1310720')
    a('s_add_u32 s7, s7, s34')
    a(f's_lshl_b32 s36, s{S_G}, 17')
    a('s_add_u32 s7, s7, s36')
    a(f's_add_u32 s{S_A}, s46, s7')
    a(f's_addc_u32 s{S_A+1}, s47, 0')
    a(f's_sub_u32 s{S_A+2}, 1310720, s36')
    a(f's_mov_b32 s{S_A+3}, 0x00020000')
    a('s_lshl_b32 s7, s6, 7')
    a(f's_lshl_b32 s36, s{S_G}, 21')
    a('s_add_u32 s36, s36, s7')
    a(f's_add_u32 s{S_WO}, s40, s36')
    a(f's_addc_u32 s{S_WO+1}, s41, 0')
    a(f's_sub_u32 s{S_WO+2}, 4194304, s36')
    a(f's_mov_b32 s{S_WO+3}, 0x00020000')
    a('s_mul_i32 s34, s5, 327680')
    a('s_lshl_b32 s35, s3, 10')
    a('s_add_u32 s35, s35, s7')
    a('s_add_u32 s34, s34, s35')
    a(f's_add_u32 s{S_OUT}, s44, s34')
    a(f's_addc_u32 s{S_OUT+1}, s45, 0')
    a(f's_sub_u32 s{S_OUT+2}, 327680, s35')
    a(f's_mov_b32 s{S_OUT+3}, 0x00020000')
    a(f's_mul_i32 s37, s{S_G}, {R*SL}')
    a(f's_lshl_b32 s{S_M0B}, s4, 11')
    a(f's_add_u32 s{S_M0B}, s{S_M0B}, s37')
    a(f's_lshl_b32 s{S_WB}, s4, 14')
    a('v_lshrrev_b32 v16, 3, v0')
    a('v_and_b32 v17, 7, v0')
    a('v_bfe_u32 v18, v16, 1, 1')
    a('v_lshlrev_b32 v18, 1, v18')
    a('v_xor_b32 v18, v17, v18')
    a('v_lshlrev_b32 v18, 4, v18')
    a(f'v_lshl_add_u32 v{V_DMAW}, v16, 10, v18')
    a('v_and_b32 v16, 31, v0')
    a('v_lshrrev_b32 v17, 5, v0')
    a('v_lshlrev_b32 v18, 6, v17')
    a(f'v_lshlrev_b32 v{V_AOFF}, 4, v0')
    a(f'v_lshl_add_u32 v{V_OOFF}, v16, 11, v18')
    a('s_lshl_b32 s7, s4, 18')
    a(f'v_add_u32 v{V_AOFF}, s7, v{V_AOFF}')
    a('s_lshl_b32 s7, s4, 16')
    a(f'v_add_u32 v{V_OOFF}, s7, v{V_OOFF}')
    a('s_lshl_b32 s7, s4, 13')
    a(f'v_lshlrev_b32 v{V_RED}, 4, v0')
    a(f'v_add_u32 v{V_RED}, s7, v{V_RED}')
    a('v_bfe_u32 v18, v0, 2, 2')
    a('v_and_b32 v19, 3, v0')
    a('v_bfe_u32 v20, v0, 4, 1')
    a('v_and_b32 v21, 1, v19')
    a('v_lshlrev_b32 v21, 6, v21')
    a('v_lshl_add_u32 v21, v20, 4, v21')
    a('v_lshrrev_b32 v22, 1, v19')
    a('v_lshl_add_u32 v21, v22, 3, v21')
    a('v_lshl_add_u32 v21, v18, 7, v21')
    a('v_lshl_add_u32 v21, v17, 12, v21')
    a('v_add_u32 v21, s37, v21')
    a('v_lshrrev_b32 v18, 1, v18')
    for mt in range(2):
        a(f'v_xor_b32 v22, {mt}, v18')
        a(f'v_lshl_add_u32 v{V_TR+mt}, v22, 5, v21')
    for i in range(32):
        a(f'v_mov_b32 v{V_ACC+i}, 0')
    QL = []; QN = []
    def issue(st):
        slot = st % R
        lab = a.newlabel('nodma')
        a(f's_cmp_gt_u32 s{S_W}, 3')
        a(f's_cbranch_scc1 {lab}')
        a(f's_add_u32 m0, s{S_M0B}, {slot*SL}')
        a(f's_add_u32 s{S_SOFF}, s{S_WB}, {st*65536 if "owsame" not in EXP else 0}')
        if 'onodma' not in EXP:
            a(f'buffer_load_dwordx4 v{V_DMAW}, s[{S_WO}:{S_WO+3}], s{S_SOFF} offen{OWF} lds')
            a(f's_add_u32 s{S_SOFF}, s{S_SOFF}, 7168')
            a(f'buffer_load_dwordx4 v{V_DMAW}, s[{S_WO}:{S_WO+3}], s{S_SOFF} offen offset:1024{OWF} lds')
        a.label(lab)
        a(f's_mov_b32 s{S_SOFF}, {4096*st if "obsame" not in EXP else 0}')
        for u in range(4 if 'onob' not in EXP else 0):
            a(f'buffer_load_dwordx4 v[{V_B+16*slot+4*u}:{V_B+16*slot+4*u+3}], v{V_AOFF}, s[{S_A}:{S_A+3}], s{S_SOFF} offen offset:{1024*u}{OBF}')
        QL.extend([st] * 6); QN.extend([st] * 4)
    def WAIT(st):
        ns = []
        for q in (QL, QN):
            last = max(i for i, t in enumerate(q) if t == st)
            ns.append(len(q) - 1 - last); del q[:last + 1]
        if ns[0] == ns[1]:
            a(f's_waitcnt vmcnt({ns[0]})'); return
        l1 = a.newlabel('w4'); l2 = a.newlabel('wj')
        a(f's_cmp_gt_u32 s{S_W}, 3')
        a(f's_cbranch_scc1 {l1}')
        a(f's_waitcnt vmcnt({ns[0]})')
        a(f's_branch {l2}')
        a.label(l1)
        a(f's_waitcnt vmcnt({ns[1]})')
        a.label(l2)
    for st in range(R - 1):
        issue(st)
    for st in range(NSTG):
        slot = st % R
        WAIT(st)
        a('s_barrier')
        if st + R - 1 < NSTG:
            issue(st + R - 1)
        for u in range(4):
            fb = V_FR + 8 * u
            for mt in range(2):
                for part in range(2):
                    a(f'ds_read_b64_tr_b16 v[{fb+4*mt+2*part}:{fb+4*mt+2*part+1}], v{V_TR+mt} offset:{slot*SL + (8*u+4*part)*128}')
        for u in range(4):
            a(f's_waitcnt lgkmcnt({4*(3-u)})')
            fb = V_FR + 8 * u
            for mt in range(2):
                a(f'v_mfma_f32_32x32x16_bf16 v[{V_ACC+16*mt}:{V_ACC+16*mt+15}], v[{fb+4*mt}:{fb+4*mt+3}], v[{V_B+16*slot+4*u}:{V_B+16*slot+4*u+3}], v[{V_ACC+16*mt}:{V_ACC+16*mt+15}]')
    a('s_nop 15')
    a('s_barrier')
    a(f's_cmp_eq_u32 s{S_G}, 0')
    a('s_cbranch_scc1 op_g0')
    for n in range(8):
        a(f'ds_write_b128 v{V_RED}, v[{V_ACC+4*n}:{V_ACC+4*n+3}] offset:{1024*n}')
    a('s_waitcnt lgkmcnt(0)')
    a('s_barrier')
    a('s_endpgm')
    a.label('op_g0')
    a('s_barrier')
    for n in range(8):
        a(f'ds_read_b128 v[{V_B+4*n}:{V_B+4*n+3}], v{V_RED} offset:{1024*n}')
    a('s_waitcnt lgkmcnt(0)')
    for i in range(32):
        a(f'v_add_f32 v{V_ACC+i}, v{V_ACC+i}, v{V_B+i}')
    for p in range(16):
        a(f'v_cvt_pk_bf16_f32 v{V_ACC+p}, v{V_ACC+2*p}, v{V_ACC+2*p+1}')
    for n in range(4):
        a(f'buffer_store_dwordx4 v[{V_ACC+4*n}:{V_ACC+4*n+3}], v{V_OOFF}, s[{S_OUT}:{S_OUT+3}], 0 offen offset:{16*n}')
    a.label('oproj_end')
    a('s_endpgm')
    return NV

def kd(name, nv):
    return f""".section .rodata,"a"
.p2align 6
.amdhsa_kernel {name}
  .amdhsa_next_free_vgpr {nv}
  .amdhsa_next_free_sgpr 96
  .amdhsa_accum_offset {(nv+3)//4*4}
  .amdhsa_group_segment_fixed_size 0
  .amdhsa_kernarg_size 104
  .amdhsa_user_sgpr_count 2
  .amdhsa_user_sgpr_kernarg_segment_ptr 1
  .amdhsa_system_sgpr_workgroup_id_x 1
.end_amdhsa_kernel
"""

def main():
    out = HEADER
    out += '; @launch kernel=attn_kernel grid=(512,1,1) block=(640,1,1) lds=163840\n'
    out += '; @launch kernel=oproj_kernel grid=(256,1,1) block=(640,1,1) lds=98304\n'
    out += '.amdgcn_target "amdgcn-amd-amdhsa--gfx950"\n.text\n'
    a = Asm()
    nv1 = gen_attn(a)
    out += '.globl attn_kernel\n.p2align 8\n.type attn_kernel,@function\n' + a.text()
    a = Asm(); a.lbl = 10000
    nv2 = gen_oproj(a)
    out += '.globl oproj_kernel\n.p2align 8\n.type oproj_kernel,@function\n' + a.text()
    out += kd('attn_kernel', nv1) + kd('oproj_kernel', nv2)
    open(sys.argv[1] if len(sys.argv) > 1 else 'concat_heads__mha_block_cached__gqa_block_cached__near_ridge.s', 'w').write(out)

main()
```

```python
import sys, os
EXP = os.environ.get('EXP','')

HEADER = open('concat_heads__mha_block_cached__gqa_block_cached__near_ridge.s.ref').read().split('; Override launch')[0]

class Asm:
    def __init__(self):
        self.lines = []
        self.lbl = 0
    def __call__(self, s):
        if 'nolds' in EXP and s.startswith('ds_read'): return
        if 'nobar' in EXP and s.startswith('s_barrier'): return
        if 'nomfma' in EXP and s.startswith('v_mfma'): return
        self.lines.append('    ' + s)
    def label(self, name):
        self.lines.append(name + ':')
    def newlabel(self, p='L'):
        self.lbl += 1
        return f'{p}_{self.lbl}'
    def comment(self, s):
        self.lines.append('    ; ' + s)
    def text(self):
        return '\n'.join(self.lines) + '\n'

def vr(base, n=1):
    return f'v{base}' if n == 1 else f'v[{base}:{base+n-1}]'
def sr(base, n=1):
    return f's{base}' if n == 1 else f's[{base}:{base+n-1}]'

NSLOT = 4
SLOTB = 16384
SCALE_LOG2E = (128 ** -0.5) * 1.4426950408889634
THR_RAW = 8.0 / SCALE_LOG2E

import struct
def f32hex(x):
    return '0x%08x' % struct.unpack('<I', struct.pack('<f', x))[0]

KVF = ' nt'
for f in ('sc0','sc1','nt'):
    if 'kv'+f in EXP: KVF += ' '+f
def gen_attn(a):
    V_DMA = 1; V_TR = 5; V_KADDR = 9; V_L = 11; V_T0 = 13; V_T1 = 14; V_T2 = 15
    V_DMAW = 13; V_XOFF = 14
    V_FR = 16; NFR = 6
    V_S = 40; V_NEGM = 56; V_Q = 72; V_X = 40; V_ACC = 104
    NV = 168
    S_W = 4; S_X = 8; S_WQ = 12; S_KV = 16; S_O = 20
    S_M0B = 24; S_SOFF = 25; S_T = 26; S_CNT = 27; S_C = 28; S_THR = 29; S_WQB = 30; S_KVB = 31; S_ROT = 33
    S_ONES = 37
    P = 40
    a.label('attn_kernel')
    a('s_cmp_ge_u32 s2, 512')
    a('s_cbranch_scc1 attn_end')
    a(f's_load_dwordx16 s[{P}:{P+15}], s[0:1], 0')
    a(f's_load_dwordx4 s[{P+16}:{P+19}], s[0:1], 64')
    a(f's_load_dwordx2 s[{P+20}:{P+21}], s[0:1], 96')
    if 'timing' in EXP:
        a('s_memtime s[80:81]')
        a('s_memrealtime s[82:83]')
        a('s_load_dwordx2 s[88:89], s[0:1], 88')
    a('v_lshrrev_b32 v1, 6, v0')
    a('v_and_b32 v0, 63, v0')
    a('s_nop 0')
    a('v_readfirstlane_b32 s4, v1')
    a('s_nop 3')
    a('s_mov_b32 s38, s2')
    a('s_mov_b32 s39, s4')
    a('s_lshl_b32 s2, s2, 1')
    a('s_cmp_ge_u32 s4, 5')
    a('s_cselect_b32 s35, 1, 0')
    a('s_add_u32 s2, s2, s35')
    a('s_mul_i32 s7, s35, 5')
    a('s_sub_u32 s4, s4, s7')
    a('s_mul_i32 s35, s35, 81920')
    a('s_lshr_b32 s3, s2, 9')
    a('s_lshr_b32 s5, s2, 5')
    a('s_and_b32 s5, s5, 15')
    a('s_and_b32 s6, s2, 31')
    a('s_waitcnt lgkmcnt(0)')
    a('s_cmp_eq_u32 s3, 0')
    a(f's_cselect_b64 s[64:65], s[{P}:{P+1}], s[{P+10}:{P+11}]')
    a(f's_cselect_b64 s[66:67], s[{P+2}:{P+3}], s[{P+12}:{P+13}]')
    a(f's_cselect_b64 s[68:69], s[{P+4}:{P+5}], s[{P+14}:{P+15}]')
    a(f's_cselect_b64 s[70:71], s[{P+6}:{P+7}], s[{P+16}:{P+17}]')
    a('s_cmp_lt_u32 s4, 2')
    a('s_cselect_b64 s[66:67], s[66:67], s[68:69]')
    a('s_lshr_b32 s7, s2, 5')
    a('s_mul_i32 s7, s7, 5')
    a('s_add_u32 s7, s7, s4')
    a('s_lshl_b32 s7, s7, 15')
    a(f's_add_u32 s7, s7, {XW_OFF}')
    a(f's_add_u32 s{S_X}, s{P+20}, s7')
    a(f's_addc_u32 s{S_X+1}, s{P+21}, 0')
    a(f's_mov_b32 s{S_X+2}, 32768')
    a(f's_mov_b32 s{S_X+3}, 0x00020000')
    a('s_lshl_b32 s7, s6, 8')
    a(f's_add_u32 s{S_WQ}, s70, s7')
    a(f's_addc_u32 s{S_WQ+1}, s71, 0')
    a(f's_sub_u32 s{S_WQ+2}, 4194304, s7')
    a(f's_mov_b32 s{S_WQ+3}, 0x00020000')
    a('s_and_b32 s7, s2, 511')
    a('s_lshl_b32 s7, s7, 18')
    a(f's_add_u32 s{S_KV}, s66, s7')
    a(f's_addc_u32 s{S_KV+1}, s67, 0')
    a(f's_mov_b32 s{S_KV+2}, 262144')
    a(f's_mov_b32 s{S_KV+3}, 0x00020000')
    a('s_mul_i32 s7, s3, 20971520')
    a('s_mul_i32 s34, s5, 1310720')
    a('s_add_u32 s7, s7, s34')
    a('s_lshl_b32 s34, s6, 13')
    a('s_add_u32 s7, s7, s34')
    a(f's_add_u32 s{S_O}, s{P+20}, s7')
    a(f's_addc_u32 s{S_O+1}, s{P+21}, 0')
    a(f's_sub_u32 s{S_O+2}, 1310720, s34')
    a(f's_mov_b32 s{S_O+3}, 0x00020000')
    a(f's_lshl_b32 s{S_M0B}, s4, 12')
    a(f's_add_u32 s{S_M0B}, s{S_M0B}, s35')
    a(f's_lshl_b32 s{S_WQB}, s4, 17')
    a(f's_and_b32 s{S_KVB}, s4, 1')
    a(f's_lshl_b32 s{S_KVB}, s{S_KVB}, 12')
    a(f's_lshr_b32 s{S_ROT}, s2, 5')
    a(f's_xor_b32 s{S_ROT}, s{S_ROT}, s2')
    a(f's_and_b32 s{S_ROT}, s{S_ROT}, 31')
    a(f's_lshl_b32 s{S_ROT}, s{S_ROT}, 13')
    a(f's_add_u32 s{S_ROT}, s{S_ROT}, s{S_KVB}')
    a(f's_mov_b32 s{S_C}, {f32hex(SCALE_LOG2E)}')
    a(f's_mov_b32 s{S_THR}, {f32hex(8.0)}')
    a(f's_mov_b32 s{S_ONES}, 0x3f803f80')
    a('v_lshrrev_b32 v16, 4, v0')
    a('v_and_b32 v17, 15, v0')
    a('v_lshlrev_b32 v18, 1, v16')
    a('v_xor_b32 v18, v17, v18')
    a('v_lshlrev_b32 v18, 4, v18')
    a(f'v_lshl_add_u32 v{V_DMAW}, v16, 13, v18')
    a('v_lshl_add_u32 v19, v16, 8, v18')
    a('v_xor_b32 v20, v17, v16')
    a('s_cmp_lt_u32 s4, 2')
    a('s_cselect_b64 vcc, -1, 0')
    for i in range(4):
        a(f'v_xor_b32 v21, {4*i}, v20')
        a('v_lshlrev_b32 v21, 4, v21')
        a('v_lshl_add_u32 v21, v16, 8, v21')
        a(f'v_cndmask_b32 v{V_DMA+i}, v19, v21, vcc')
    a('v_and_b32 v16, 31, v0')
    a('v_lshrrev_b32 v17, 5, v0')
    a(f'v_lshlrev_b32 v{V_XOFF}, 4, v0')
    a('v_and_b32 v18, 15, v16')
    a('v_lshlrev_b32 v19, 3, v17')
    a('v_xor_b32 v18, v18, v19')
    a('v_lshlrev_b32 v18, 4, v18')
    a(f'v_lshl_add_u32 v{V_KADDR}, v16, 8, v18')
    a(f'v_add_u32 v{V_KADDR}, s35, v{V_KADDR}')
    a('v_bfe_u32 v18, v0, 2, 2')
    a('v_and_b32 v19, 3, v0')
    a('v_bfe_u32 v20, v0, 4, 1')
    a('v_and_b32 v21, 1, v19')
    a('v_lshlrev_b32 v21, 7, v21')
    a('v_lshl_add_u32 v21, v20, 4, v21')
    a('v_lshrrev_b32 v22, 1, v19')
    a('v_lshl_add_u32 v21, v22, 3, v21')
    a('v_lshl_add_u32 v21, v18, 8, v21')
    a('v_lshl_add_u32 v21, v17, 13, v21')
    a('v_add_u32 v21, s35, v21')
    a('v_add_u32 v21, 32768, v21')
    for mt in range(4):
        a(f'v_xor_b32 v22, {mt}, v18')
        a(f'v_lshl_add_u32 v{V_TR+mt}, v22, 5, v21')
    a('v_mul_u32_u24 v0, 7168, v17')
    a('v_add_u32 v0, 32768, v0')
    for i in range(64):
        a(f'v_mov_b32 v{V_ACC+i}, 0')

    CL = ('L', 'N')
    Q = {c: [] for c in CL}
    def DMA(tag, slot, mode, imm):
        if 'nodma' in EXP: return
        lab = a.newlabel('nodma')
        a(f's_cmp_gt_u32 s{S_W}, 3'); a(f's_cbranch_scc1 {lab}')
        a(f's_add_u32 m0, s{S_M0B}, {slot*SLOTB}')
        if mode == 'wq':
            a(f's_add_u32 s{S_SOFF}, s{S_WQB}, {imm*524288}')
            for i in range(4):
                a(f'buffer_load_dwordx4 v{V_DMAW}, s[{S_WQ}:{S_WQ+3}], s{S_SOFF} offen offset:{1024*i} lds')
                if i < 3: a(f's_add_u32 s{S_SOFF}, s{S_SOFF}, 31744')
        else:
            a(f's_add_u32 s{S_SOFF}, s{S_ROT}, {(imm*8192) & 0x3ffff}')
            a(f's_and_b32 s{S_SOFF}, s{S_SOFF}, 0x3ffff')
            for i in range(4):
                a(f'buffer_load_dwordx4 v{V_DMA+i}, s[{S_KV}:{S_KV+3}], s{S_SOFF} offen offset:{1024*i}{KVF} lds')
        a.label(lab)
        Q['L'].extend([tag] * 4)
    def XL(stage):
        base = V_X + 16 * (stage % 3)
        a(f's_mov_b32 s78, {4096*stage}')
        for u in range(4):
            a(f'buffer_load_dwordx4 v[{base+4*u}:{base+4*u+3}], v{V_XOFF}, s[{S_X}:{S_X+3}], s78 offen offset:{1024*u}')
        for c in CL: Q[c].extend([('X', stage)] * 4)
    def WAIT(tags):
        ns = {}
        for c in CL:
            q = Q[c]; last = -1
            for i, t in enumerate(q):
                if t in tags: last = i
            ns[c] = min(len(q) - 1 - last, 63)
            del q[:last + 1]
        if len(set(ns.values())) == 1:
            a(f's_waitcnt vmcnt({ns["L"]})'); return
        lN = a.newlabel('wn'); lj = a.newlabel('wj')
        a(f's_cmp_gt_u32 s{S_W}, 3'); a(f's_cbranch_scc1 {lN}')
        a(f's_waitcnt vmcnt({ns["L"]})'); a(f's_branch {lj}')
        a.label(lN); a(f's_waitcnt vmcnt({ns["N"]})')
        a.label(lj)
    DMA(('W', 0), 2, 'wq', 0); XL(0); DMA(('W', 1), 3, 'wq', 1); XL(1)
    DMA(('S', 0), 0, 'kv', 0); DMA(('S', 1), 1, 'kv', 1)
    XL(2)
    if 'nowopf' not in EXP:
        a('s_cmp_lt_u32 s38, 256')
        a(f's_cselect_b64 s[72:73], s[{P+8}:{P+9}], s[{P+18}:{P+19}]')
        a('s_mov_b32 s74, 4194304')
        a('s_mov_b32 s75, 0x00020000')
        a('s_and_b32 s76, s38, 255')
        a('s_lshl_b32 s76, s76, 14')
        a('s_min_u32 s77, s39, 7')
        a('s_lshl_b32 s77, s77, 11')
        a('s_add_u32 s76, s76, s77')
        a('v_mbcnt_lo_u32_b32 v88, -1, 0')
        a('v_mbcnt_hi_u32_b32 v88, -1, v88')
        a('v_lshlrev_b32 v88, 4, v88')
        a('buffer_load_dwordx4 v[92:95], v88, s[72:75], s76 offen')
        a('buffer_load_dwordx4 v[96:99], v88, s[72:75], s76 offen offset:1024')
        for c in CL: Q[c].extend([('P',)] * 2)
    for s in range(8):
        a.comment(f'==== Q stage {s}')
        WAIT([('W', s), ('X', s)])
        a('s_barrier')
        if s + 2 < 8:
            DMA(('W', s + 2), 2 + (s + 2) % 3, 'wq', s + 2)
        elif s == 7:
            DMA(('S', 2), 2, 'kv', 2)
        slot = s % 3
        xb = V_X + 16 * (s % 3)
        uses = [(u, mt) for u in range(4) for mt in range(4)]
        def rd(i):
            u, mt = uses[i]; fb = V_FR + 4 * (i % NFR)
            for part in range(2):
                a(f'ds_read_b64_tr_b16 v[{fb+2*part}:{fb+2*part+1}], v{V_TR+mt} offset:{slot*SLOTB + (8*u+4*part)*256}')
        for i in range(NFR - 1): rd(i)
        for i in range(16):
            nxt = i + NFR - 1
            if nxt < 16: rd(nxt)
            outstanding = min(nxt, 15) - i
            a(f's_waitcnt lgkmcnt({2*outstanding})')
            u, mt = uses[i]; fb = V_FR + 4 * (i % NFR)
            a(f'v_mfma_f32_32x32x16_bf16 v[{V_ACC+16*mt}:{V_ACC+16*mt+15}], v[{fb}:{fb+3}], v[{xb+4*u}:{xb+4*u+3}], v[{V_ACC+16*mt}:{V_ACC+16*mt+15}]')
        if s + 3 < 8:
            XL(s + 3)
    if 'tq' in EXP:
        a('s_memtime s[94:95]')
    a('s_nop 15')
    for i in range(64):
        a(f'v_mul_f32 v{V_ACC+i}, s{S_C}, v{V_ACC+i}')
    for p in range(32):
        a(f'v_cvt_pk_bf16_f32 v{V_Q+p}, v{V_ACC+2*p}, v{V_ACC+2*p+1}')
    for i in range(64):
        a(f'v_mov_b32 v{V_ACC+i}, 0')
    for mt in range(4):
        a(f'v_sub_u32 v{V_TR+mt}, v{V_TR+mt}, v0')
    a(f'v_mov_b32 v{V_L}, 0')

    def att_iter(slot, first=False):
        sb = slot * SLOTB
        S = V_S
        uses = [('K', i) for i in range(8)] + [('V', i) for i in range(8)]
        def rd_ops(i):
            kind, n = uses[i]; fb = V_FR + 4 * (i % NFR)
            if kind == 'K':
                if n == 0:
                    return [f'ds_read_b128 v[{fb}:{fb+3}], v{V_KADDR} offset:{sb}'], 1
                return [f'v_xor_b32 v{V_T2}, {16*n}, v{V_KADDR}', f'ds_read_b128 v[{fb}:{fb+3}], v{V_T2} offset:{sb}'], 1
            ks, mt = n // 4, n % 4
            return [f'ds_read_b64_tr_b16 v[{fb+2*part}:{fb+2*part+1}], v{V_TR+mt} offset:{sb + 8192 + (16*ks+8*part)*256}' for part in range(2)], 2
        cnt = [rd_ops(i)[1] for i in range(16)]
        issued = 0
        def issue_upto(n):
            nonlocal issued
            while issued < min(n, 16):
                for op in rd_ops(issued)[0]: a(op)
                issued += 1
        issue_upto(NFR - 1)
        for i in range(8):
            issue_upto(i + NFR)
            a(f's_waitcnt lgkmcnt({sum(cnt[i+1:issued])})')
            fb = V_FR + 4 * (i % NFR)
            c = ('0' if first else f'v[{V_NEGM}:{V_NEGM+15}]') if i == 0 else f'v[{S}:{S+15}]'
            a(f'v_mfma_f32_32x32x16_bf16 v[{S}:{S+15}], v[{fb}:{fb+3}], v[{V_Q+4*i}:{V_Q+4*i+3}], {c}')
        a('s_nop 11')
        a(f'v_max3_f32 v{V_T0}, v{S}, v{S+1}, v{S+2}')
        a(f'v_max3_f32 v{V_T1}, v{S+3}, v{S+4}, v{S+5}')
        a(f'v_max3_f32 v{V_T0}, v{V_T0}, v{S+6}, v{S+7}')
        a(f'v_max3_f32 v{V_T1}, v{V_T1}, v{S+8}, v{S+9}')
        a(f'v_max3_f32 v{V_T0}, v{V_T0}, v{S+10}, v{S+11}')
        a(f'v_max3_f32 v{V_T1}, v{V_T1}, v{S+12}, v{S+13}')
        a(f'v_max3_f32 v{V_T0}, v{V_T0}, v{S+14}, v{S+15}')
        a(f'v_max_f32 v{V_T0}, v{V_T0}, v{V_T1}')
        lab = None
        if not first:
            a(f'v_cmp_lt_f32 vcc, s{S_THR}, v{V_T0}')
            lab = a.newlabel('norescale')
            a(f's_cbranch_vccz {lab}')
        a(f'v_mov_b32 v{V_T1}, v{V_T0}')
        a('s_nop 1')
        a(f'v_permlane32_swap_b32 v{V_T0}, v{V_T1}')
        a(f'v_max_f32 v{V_T0}, v{V_T0}, v{V_T1}')
        if first:
            for i in range(16):
                a(f'v_sub_f32 v{V_NEGM+i}, 0, v{V_T0}')
        else:
            a(f'v_max_f32 v{V_T0}, 0, v{V_T0}')
            a(f'v_sub_f32 v{V_T1}, 0, v{V_T0}')
            a(f'v_exp_f32 v{V_T1}, v{V_T1}')
            for i in range(16):
                a(f'v_sub_f32 v{V_NEGM+i}, v{V_NEGM+i}, v{V_T0}')
            a(f'v_mul_f32 v{V_L}, v{V_L}, v{V_T1}')
            for i in range(64):
                a(f'v_mul_f32 v{V_ACC+i}, v{V_ACC+i}, v{V_T1}')
        for i in range(16):
            a(f'v_sub_f32 v{S+i}, v{S+i}, v{V_T0}')
        if lab: a.label(lab)
        for i in range(16):
            a(f'v_exp_f32 v{S+i}, v{S+i}')
        a('s_nop 0')
        for p in range(8):
            a(f'v_cvt_pk_bf16_f32 v{S+p}, v{S+2*p}, v{S+2*p+1}')
        for p in range(8):
            a(f'v_dot2c_f32_bf16 v{V_L}, s{S_ONES}, v{S+p}')
        for i in range(8, 16):
            issue_upto(i + NFR)
            a(f's_waitcnt lgkmcnt({sum(cnt[i+1:issued])})')
            fb = V_FR + 4 * (i % NFR)
            n = i - 8; ks, mt = n // 4, n % 4
            a(f'v_mfma_f32_32x32x16_bf16 v[{V_ACC+16*mt}:{V_ACC+16*mt+15}], v[{fb}:{fb+3}], v[{S+4*ks}:{S+4*ks+3}], v[{V_ACC+16*mt}:{V_ACC+16*mt+15}]')

    def dma_loop(slot):
        if 'nodma' in EXP: return
        lab = a.newlabel('nodma')
        a(f's_cmp_gt_u32 s{S_W}, 3'); a(f's_cbranch_scc1 {lab}')
        a(f's_add_u32 m0, s{S_M0B}, {slot*SLOTB}')
        a('s_nop 0')
        for i in range(4):
            a(f'buffer_load_dwordx4 v{V_DMA+i}, s[{S_KV}:{S_KV+3}], s{S_T} offen offset:{1024*i}{KVF} lds')
        a.label(lab)
    a('s_waitcnt vmcnt(8)')
    a('s_barrier')
    DMA(('S', 3), 3, 'kv', 3)
    att_iter(0, first=True)
    a(f's_add_u32 s{S_T}, s{S_ROT}, {4*8192}')
    a(f's_and_b32 s{S_T}, s{S_T}, 0x3ffff')
    a(f's_mov_b32 s{S_CNT}, 0')
    a.label('att_loop')
    for k in range(4):
        t = 1 + k
        a('s_waitcnt vmcnt(8)')
        a('s_barrier')
        dma_loop((t + 3) % 4)
        a(f's_add_u32 s{S_T}, s{S_T}, 8192')
        a(f's_and_b32 s{S_T}, s{S_T}, 0x3ffff')
        att_iter(t % 4)
    a(f's_add_u32 s{S_CNT}, s{S_CNT}, 1')
    a(f's_cmp_lt_u32 s{S_CNT}, 7')
    a('s_cbranch_scc1 att_loop')
    for t in range(29, 32):
        a.comment(f'==== att iter {t} (tail)')
        a(f's_waitcnt vmcnt({4*(31-t)})')
        a('s_barrier')
        att_iter(t % 4)
    a('s_nop 15')
    a(f'v_mov_b32 v{V_T1}, v{V_L}')
    a('v_mbcnt_lo_u32_b32 v0, -1, 0')
    a('v_mbcnt_hi_u32_b32 v0, -1, v0')
    a(f'v_permlane32_swap_b32 v{V_L}, v{V_T1}')
    a(f'v_add_f32 v{V_L}, v{V_L}, v{V_T1}')
    a(f'v_rcp_f32 v{V_L}, v{V_L}')
    a('v_and_b32 v16, 31, v0')
    a('v_lshrrev_b32 v17, 5, v0')
    a('v_lshlrev_b32 v18, 12, v17')
    a('v_lshl_add_u32 v18, v16, 4, v18')
    a('s_lshl_b32 s7, s4, 18')
    a('v_add_u32 v18, s7, v18')
    for i in range(64):
        a(f'v_mul_f32 v{V_ACC+i}, v{V_ACC+i}, v{V_L}')
    for p in range(32):
        a(f'v_cvt_pk_bf16_f32 v{V_ACC+p}, v{V_ACC+2*p}, v{V_ACC+2*p+1}')
    for n in range(8):
        hfp, u = n // 4, n % 4
        a(f'buffer_store_dwordx4 v[{V_ACC+4*n}:{V_ACC+4*n+3}], v18, s[{S_O}:{S_O+3}], 0 offen offset:{u*1024 + hfp*512}')
    if 'timing' in EXP:
        a('s_memtime s[84:85]')
        a('s_memrealtime s[86:87]')
        a('s_waitcnt lgkmcnt(0)')
        a('s_sub_u32 s84, s84, s80')
        a('s_sub_u32 s86, s86, s82')
        if 'tq' in EXP:
            a('s_sub_u32 s86, s94, s80')
        a('s_mov_b32 s90, 256')
        a('s_mov_b32 s91, 0x00020000')
        a('s_and_b32 s92, s2, 31')
        a('s_lshl_b32 s92, s92, 3')
        a('v_mov_b32 v0, s92')
        a('v_mov_b32 v2, s84')
        a('v_mov_b32 v3, s86')
        a('s_cmp_lt_u32 s2, 32')
        a('s_cbranch_scc0 attn_end')
        a('buffer_store_dwordx2 v[2:3], v0, s[88:91], 0 offen')
    a.label('attn_end')
    a('s_endpgm')
    return NV

OWF = os.environ.get('OWF','')
OBF = os.environ.get('OBF','')
def gen_oproj(a):
    R = int(os.environ.get('OR', '6'))
    NSTG = 32
    V_DMAW = 1
    V_AOFF = 2
    V_TR = 3
    V_OOFF = 5
    V_RED = 6
    V_FR = 8
    V_B = 40
    V_ACC = 136
    NV = 168
    S_W = 4
    S_A = 8; S_WO = 12; S_OUT = 16
    S_M0B = 20; S_SOFF = 21; S_WB = 22; S_G = 23
    SL = 8192
    a.label('oproj_kernel')
    a('s_cmp_ge_u32 s2, 256')
    a('s_cbranch_scc1 oproj_end')
    a('s_load_dwordx2 s[40:41], s[0:1], 32')
    a('s_load_dwordx2 s[42:43], s[0:1], 72')
    a('s_load_dwordx2 s[44:45], s[0:1], 80')
    a('s_load_dwordx2 s[46:47], s[0:1], 96')
    if 'xcc' in EXP:
        a('s_load_dwordx2 s[88:89], s[0:1], 88')
        a('s_getreg_b32 s84, hwreg(HW_REG_XCC_ID)')
        a('s_waitcnt lgkmcnt(0)')
        a('s_mov_b32 s90, 256')
        a('s_mov_b32 s91, 0x00020000')
        a('s_lshl_b32 s92, s2, 2')
        a('v_mov_b32 v2, s92')
        a('v_mov_b32 v3, s84')
        a('buffer_store_dword v3, v2, s[88:91], 0 offen')
    a('v_lshrrev_b32 v1, 6, v0')
    a('v_and_b32 v0, 63, v0')
    a('s_bfe_u32 s3, s2, 0x10002')
    a('v_readfirstlane_b32 s4, v1')
    a('s_and_b32 s5, s2, 3')
    a('s_lshl_b32 s5, s5, 2')
    a('s_bfe_u32 s6, s2, 0x20003')
    a('s_add_u32 s5, s5, s6')
    a('s_lshr_b32 s6, s2, 5')
    a('s_cmp_ge_u32 s4, 5')
    a(f's_cselect_b32 s{S_G}, 1, 0')
    a(f's_mul_i32 s7, s{S_G}, 5')
    a('s_sub_u32 s4, s4, s7')
    a('s_waitcnt lgkmcnt(0)')
    a('s_cmp_eq_u32 s3, 0')
    a('s_cselect_b64 s[40:41], s[40:41], s[42:43]')
    a('s_mul_i32 s7, s3, 20971520')
    a('s_mul_i32 s34, s5, 1310720')
    a('s_add_u32 s7, s7, s34')
    a(f's_lshl_b32 s36, s{S_G}, 17')
    a('s_add_u32 s7, s7, s36')
    a(f's_add_u32 s{S_A}, s46, s7')
    a(f's_addc_u32 s{S_A+1}, s47, 0')
    a(f's_sub_u32 s{S_A+2}, 1310720, s36')
    a(f's_mov_b32 s{S_A+3}, 0x00020000')
    a('s_lshl_b32 s7, s6, 7')
    a(f's_lshl_b32 s36, s{S_G}, 21')
    a('s_add_u32 s36, s36, s7')
    a(f's_add_u32 s{S_WO}, s40, s36')
    a(f's_addc_u32 s{S_WO+1}, s41, 0')
    a(f's_sub_u32 s{S_WO+2}, 4194304, s36')
    a(f's_mov_b32 s{S_WO+3}, 0x00020000')
    a('s_mul_i32 s34, s5, 327680')
    a('s_lshl_b32 s35, s3, 10')
    a('s_add_u32 s35, s35, s7')
    a('s_add_u32 s34, s34, s35')
    a(f's_add_u32 s{S_OUT}, s44, s34')
    a(f's_addc_u32 s{S_OUT+1}, s45, 0')
    a(f's_sub_u32 s{S_OUT+2}, 327680, s35')
    a(f's_mov_b32 s{S_OUT+3}, 0x00020000')
    a(f's_mul_i32 s37, s{S_G}, {R*SL}')
    a(f's_lshl_b32 s{S_M0B}, s4, 11')
    a(f's_add_u32 s{S_M0B}, s{S_M0B}, s37')
    a(f's_lshl_b32 s{S_WB}, s4, 14')
    a('v_lshrrev_b32 v16, 3, v0')
    a('v_and_b32 v17, 7, v0')
    a('v_bfe_u32 v18, v16, 1, 1')
    a('v_lshlrev_b32 v18, 1, v18')
    a('v_xor_b32 v18, v17, v18')
    a('v_lshlrev_b32 v18, 4, v18')
    a(f'v_lshl_add_u32 v{V_DMAW}, v16, 10, v18')
    a('v_and_b32 v16, 31, v0')
    a('v_lshrrev_b32 v17, 5, v0')
    a('v_lshlrev_b32 v18, 6, v17')
    a(f'v_lshlrev_b32 v{V_AOFF}, 4, v0')
    a(f'v_lshl_add_u32 v{V_OOFF}, v16, 11, v18')
    a('s_lshl_b32 s7, s4, 18')
    a(f'v_add_u32 v{V_AOFF}, s7, v{V_AOFF}')
    a('s_lshl_b32 s7, s4, 16')
    a(f'v_add_u32 v{V_OOFF}, s7, v{V_OOFF}')
    a('s_lshl_b32 s7, s4, 13')
    a(f'v_lshlrev_b32 v{V_RED}, 4, v0')
    a(f'v_add_u32 v{V_RED}, s7, v{V_RED}')
    a('v_bfe_u32 v18, v0, 2, 2')
    a('v_and_b32 v19, 3, v0')
    a('v_bfe_u32 v20, v0, 4, 1')
    a('v_and_b32 v21, 1, v19')
    a('v_lshlrev_b32 v21, 6, v21')
    a('v_lshl_add_u32 v21, v20, 4, v21')
    a('v_lshrrev_b32 v22, 1, v19')
    a('v_lshl_add_u32 v21, v22, 3, v21')
    a('v_lshl_add_u32 v21, v18, 7, v21')
    a('v_lshl_add_u32 v21, v17, 12, v21')
    a('v_add_u32 v21, s37, v21')
    a('v_lshrrev_b32 v18, 1, v18')
    for mt in range(2):
        a(f'v_xor_b32 v22, {mt}, v18')
        a(f'v_lshl_add_u32 v{V_TR+mt}, v22, 5, v21')
    for i in range(32):
        a(f'v_mov_b32 v{V_ACC+i}, 0')
    QL = []; QN = []
    def issue(st):
        slot = st % R
        lab = a.newlabel('nodma')
        a(f's_cmp_gt_u32 s{S_W}, 3')
        a(f's_cbranch_scc1 {lab}')
        a(f's_add_u32 m0, s{S_M0B}, {slot*SL}')
        a(f's_add_u32 s{S_SOFF}, s{S_WB}, {st*65536 if "owsame" not in EXP else 0}')
        if 'onodma' not in EXP:
            a(f'buffer_load_dwordx4 v{V_DMAW}, s[{S_WO}:{S_WO+3}], s{S_SOFF} offen{OWF} lds')
            a(f's_add_u32 s{S_SOFF}, s{S_SOFF}, 7168')
            a(f'buffer_load_dwordx4 v{V_DMAW}, s[{S_WO}:{S_WO+3}], s{S_SOFF} offen offset:1024{OWF} lds')
        a.label(lab)
        a(f's_mov_b32 s{S_SOFF}, {4096*st if "obsame" not in EXP else 0}')
        for u in range(4 if 'onob' not in EXP else 0):
            a(f'buffer_load_dwordx4 v[{V_B+16*slot+4*u}:{V_B+16*slot+4*u+3}], v{V_AOFF}, s[{S_A}:{S_A+3}], s{S_SOFF} offen offset:{1024*u}{OBF}')
        QL.extend([st] * 6); QN.extend([st] * 4)
    def WAIT(st):
        ns = []
        for q in (QL, QN):
            last = max(i for i, t in enumerate(q) if t == st)
            ns.append(len(q) - 1 - last); del q[:last + 1]
        if ns[0] == ns[1]:
            a(f's_waitcnt vmcnt({ns[0]})'); return
        l1 = a.newlabel('w4'); l2 = a.newlabel('wj')
        a(f's_cmp_gt_u32 s{S_W}, 3')
        a(f's_cbranch_scc1 {l1}')
        a(f's_waitcnt vmcnt({ns[0]})')
        a(f's_branch {l2}')
        a.label(l1)
        a(f's_waitcnt vmcnt({ns[1]})')
        a.label(l2)
    for st in range(R - 1):
        issue(st)
    for st in range(NSTG):
        slot = st % R
        WAIT(st)
        a('s_barrier')
        if st + R - 1 < NSTG:
            issue(st + R - 1)
        for u in range(4):
            fb = V_FR + 8 * u
            for mt in range(2):
                for part in range(2):
                    a(f'ds_read_b64_tr_b16 v[{fb+4*mt+2*part}:{fb+4*mt+2*part+1}], v{V_TR+mt} offset:{slot*SL + (8*u+4*part)*128}')
        for u in range(4):
            a(f's_waitcnt lgkmcnt({4*(3-u)})')
            fb = V_FR + 8 * u
            for mt in range(2):
                a(f'v_mfma_f32_32x32x16_bf16 v[{V_ACC+16*mt}:{V_ACC+16*mt+15}], v[{fb+4*mt}:{fb+4*mt+3}], v[{V_B+16*slot+4*u}:{V_B+16*slot+4*u+3}], v[{V_ACC+16*mt}:{V_ACC+16*mt+15}]')
    a('s_nop 15')
    a('s_barrier')
    a(f's_cmp_eq_u32 s{S_G}, 0')
    a('s_cbranch_scc1 op_g0')
    for n in range(8):
        a(f'ds_write_b128 v{V_RED}, v[{V_ACC+4*n}:{V_ACC+4*n+3}] offset:{1024*n}')
    a('s_waitcnt lgkmcnt(0)')
    a('s_barrier')
    a('s_endpgm')
    a.label('op_g0')
    a('s_barrier')
    for n in range(8):
        a(f'ds_read_b128 v[{V_B+4*n}:{V_B+4*n+3}], v{V_RED} offset:{1024*n}')
    a('s_waitcnt lgkmcnt(0)')
    for i in range(32):
        a(f'v_add_f32 v{V_ACC+i}, v{V_ACC+i}, v{V_B+i}')
    for p in range(16):
        a(f'v_cvt_pk_bf16_f32 v{V_ACC+p}, v{V_ACC+2*p}, v{V_ACC+2*p+1}')
    for n in range(4):
        a(f'buffer_store_dwordx4 v[{V_ACC+4*n}:{V_ACC+4*n+3}], v{V_OOFF}, s[{S_OUT}:{S_OUT+3}], 0 offen offset:{16*n}')
    a.label('oproj_end')
    a('s_endpgm')
    return NV


XW_OFF = 2 * 20971520
def gen_repack(a):
    a.label('repack_kernel')
    a('s_cmp_ge_u32 s2, 160')
    a('s_cbranch_scc1 repack_end')
    a('s_load_dwordx2 s[8:9], s[0:1], 0')
    a('s_load_dwordx2 s[10:11], s[0:1], 40')
    a('s_load_dwordx2 s[12:13], s[0:1], 96')
    a('v_lshrrev_b32 v1, 6, v0')
    a('v_and_b32 v0, 63, v0')
    a('s_nop 0')
    a('v_readfirstlane_b32 s4, v1')
    a('s_cmp_ge_u32 s2, 80')
    a('s_cselect_b32 s3, 1, 0')
    a('s_mul_i32 s5, s3, 80')
    a('s_sub_u32 s5, s2, s5')
    a('s_waitcnt lgkmcnt(0)')
    a('s_cmp_eq_u32 s3, 0')
    a('s_cselect_b64 s[8:9], s[8:9], s[10:11]')
    a('s_lshl_b32 s6, s5, 15')
    a('s_add_u32 s16, s8, s6')
    a('s_addc_u32 s17, s9, 0')
    a('s_mov_b32 s18, 32768')
    a('s_mov_b32 s19, 0x00020000')
    a('s_lshl_b32 s6, s2, 15')
    a(f's_add_u32 s6, s6, {XW_OFF}')
    a('s_add_u32 s20, s12, s6')
    a('s_addc_u32 s21, s13, 0')
    a('s_mov_b32 s22, 32768')
    a('s_mov_b32 s23, 0x00020000')
    a('v_and_b32 v2, 31, v0')
    a('v_lshrrev_b32 v3, 5, v0')
    a('v_lshlrev_b32 v4, 6, v3')
    a('v_lshl_add_u32 v4, v2, 10, v4')
    a('s_lshl_b32 s7, s4, 8')
    a('v_add_u32 v4, s7, v4')
    a('v_lshlrev_b32 v5, 4, v0')
    a('s_lshl_b32 s7, s4, 13')
    a('v_add_u32 v5, s7, v5')
    for j in range(8):
        st, u = j // 4, j % 4
        a(f'buffer_load_dwordx4 v[{8+4*j}:{11+4*j}], v4, s[16:19], 0 offen offset:{128*st+16*u}')
    for j in range(8):
        st, u = j // 4, j % 4
        a(f's_waitcnt vmcnt({7-j if j < 7 else 0})') if j == 0 else None
        if j > 0: a(f's_waitcnt vmcnt({7-j+j})') if False else None
    a('s_waitcnt vmcnt(0)')
    for j in range(8):
        st, u = j // 4, j % 4
        if st == 0:
            a(f'buffer_store_dwordx4 v[{8+4*j}:{11+4*j}], v5, s[20:23], 0 offen offset:{1024*u}')
    a('v_add_u32 v5, 4096, v5')
    for j in range(4, 8):
        u = j % 4
        a(f'buffer_store_dwordx4 v[{8+4*j}:{11+4*j}], v5, s[20:23], 0 offen offset:{1024*u}')
    a.label('repack_end')
    a('s_endpgm')
    return 48

def kd(name, nv):
    return f""".section .rodata,"a"
.p2align 6
.amdhsa_kernel {name}
  .amdhsa_next_free_vgpr {nv}
  .amdhsa_next_free_sgpr 96
  .amdhsa_accum_offset {(nv+3)//4*4}
  .amdhsa_group_segment_fixed_size 0
  .amdhsa_kernarg_size 104
  .amdhsa_user_sgpr_count 2
  .amdhsa_user_sgpr_kernarg_segment_ptr 1
  .amdhsa_system_sgpr_workgroup_id_x 1
.end_amdhsa_kernel
"""

def main():
    out = HEADER
    out += '; @launch kernel=repack_kernel grid=(160,1,1) block=(256,1,1) lds=0\n'
    out += '; @launch kernel=attn_kernel grid=(512,1,1) block=(640,1,1) lds=163840\n'
    out += '; @launch kernel=oproj_kernel grid=(256,1,1) block=(640,1,1) lds=98304\n'
    out += '.amdgcn_target "amdgcn-amd-amdhsa--gfx950"\n.text\n'
    a = Asm()
    nv1 = gen_attn(a)
    out += '.globl attn_kernel\n.p2align 8\n.type attn_kernel,@function\n' + a.text()
    a = Asm(); a.lbl = 10000
    nv2 = gen_oproj(a)
    out += '.globl oproj_kernel\n.p2align 8\n.type oproj_kernel,@function\n' + a.text()
    a = Asm(); a.lbl = 20000
    nv0 = gen_repack(a)
    out += '.globl repack_kernel\n.p2align 8\n.type repack_kernel,@function\n' + a.text()
    out += kd('repack_kernel', nv0) + kd('attn_kernel', nv1) + kd('oproj_kernel', nv2)
    open(sys.argv[1] if len(sys.argv) > 1 else 'concat_heads__mha_block_cached__gqa_block_cached__near_ridge.s', 'w').write(out)

main()
```

```python
import sys, os
EXP = os.environ.get('EXP','')

HEADER = open('concat_heads__mha_block_cached__gqa_block_cached__near_ridge.s.ref').read().split('; Override launch')[0]

class Asm:
    def __init__(self):
        self.lines = []
        self.lbl = 0
    def __call__(self, s):
        if 'nolds' in EXP and s.startswith('ds_read'): return
        if 'nobar' in EXP and s.startswith('s_barrier'): return
        if 'nomfma' in EXP and s.startswith('v_mfma'): return
        self.lines.append('    ' + s)
    def label(self, name):
        self.lines.append(name + ':')
    def newlabel(self, p='L'):
        self.lbl += 1
        return f'{p}_{self.lbl}'
    def comment(self, s):
        self.lines.append('    ; ' + s)
    def text(self):
        return '\n'.join(self.lines) + '\n'

def vr(base, n=1):
    return f'v{base}' if n == 1 else f'v[{base}:{base+n-1}]'
def sr(base, n=1):
    return f's{base}' if n == 1 else f's[{base}:{base+n-1}]'

NSLOT = 4
SLOTB = 16384
SCALE_LOG2E = (128 ** -0.5) * 1.4426950408889634
THR_RAW = 8.0 / SCALE_LOG2E

import struct
def f32hex(x):
    return '0x%08x' % struct.unpack('<I', struct.pack('<f', x))[0]

KVF = ' nt'
for f in ('sc0','sc1','nt'):
    if 'kv'+f in EXP: KVF += ' '+f
def gen_attn(a):
    V_DMA = 1; V_TR = 5; V_KADDR = 9; V_L = 11; V_T0 = 13; V_T1 = 14; V_T2 = 15
    V_DMAW = 13; V_XOFF = 14
    V_FR = 16; NFR = 6
    V_S = 40; V_NEGM = 56; V_Q = 72; V_X = 40; V_ACC = 104
    NV = 168
    S_W = 4; S_X = 8; S_WQ = 12; S_KV = 16; S_O = 20
    S_M0B = 24; S_SOFF = 25; S_T = 26; S_CNT = 27; S_C = 28; S_THR = 29; S_WQB = 30; S_KVB = 31; S_ROT = 33
    S_ONES = 37
    P = 40
    a.label('attn_kernel')
    a('s_cmp_ge_u32 s2, 512')
    a('s_cbranch_scc1 attn_end')
    if 'sleep' in EXP:
        a('s_sleep 127')
    a(f's_load_dwordx16 s[{P}:{P+15}], s[0:1], 0')
    a(f's_load_dwordx4 s[{P+16}:{P+19}], s[0:1], 64')
    a(f's_load_dwordx2 s[{P+20}:{P+21}], s[0:1], 96')
    if 'timing' in EXP:
        a('s_memtime s[80:81]')
        a('s_memrealtime s[82:83]')
        a('s_load_dwordx2 s[88:89], s[0:1], 88')
    a('v_lshrrev_b32 v1, 6, v0')
    a('v_and_b32 v0, 63, v0')
    a('s_nop 0')
    a('v_readfirstlane_b32 s4, v1')
    a('s_nop 3')
    a('s_mov_b32 s38, s2')
    a('s_mov_b32 s39, s4')
    a('s_cmp_ge_u32 s4, 5')
    a('s_cselect_b32 s35, 1, 0')
    a('s_and_b32 s7, s2, 15')
    a('s_lshl_b32 s7, s7, 5')
    a('s_bfe_u32 s34, s2, 0x40004')
    a('s_lshl_b32 s34, s34, 1')
    a('s_add_u32 s7, s7, s34')
    a('s_lshr_b32 s2, s2, 8')
    a('s_lshl_b32 s2, s2, 9')
    a('s_add_u32 s2, s2, s7')
    a('s_add_u32 s2, s2, s35')
    a('s_mul_i32 s7, s35, 5')
    a('s_sub_u32 s4, s4, s7')
    a('s_mul_i32 s35, s35, 81920')
    a('s_lshr_b32 s3, s2, 9')
    a('s_lshr_b32 s5, s2, 5')
    a('s_and_b32 s5, s5, 15')
    a('s_and_b32 s6, s2, 31')
    a('s_waitcnt lgkmcnt(0)')
    a('s_cmp_eq_u32 s3, 0')
    a(f's_cselect_b64 s[64:65], s[{P}:{P+1}], s[{P+10}:{P+11}]')
    a(f's_cselect_b64 s[66:67], s[{P+2}:{P+3}], s[{P+12}:{P+13}]')
    a(f's_cselect_b64 s[68:69], s[{P+4}:{P+5}], s[{P+14}:{P+15}]')
    a(f's_cselect_b64 s[70:71], s[{P+6}:{P+7}], s[{P+16}:{P+17}]')
    a('s_cmp_lt_u32 s4, 2')
    a('s_cselect_b64 s[66:67], s[66:67], s[68:69]')
    a('s_lshr_b32 s7, s2, 5')
    a('s_mul_i32 s7, s7, 5')
    a('s_add_u32 s7, s7, s4')
    a('s_lshl_b32 s7, s7, 15')
    a(f's_add_u32 s7, s7, {XW_OFF}')
    a(f's_add_u32 s{S_X}, s{P+20}, s7')
    a(f's_addc_u32 s{S_X+1}, s{P+21}, 0')
    a(f's_mov_b32 s{S_X+2}, 32768')
    a(f's_mov_b32 s{S_X+3}, 0x00020000')
    a('s_lshl_b32 s7, s6, 8')
    a(f's_add_u32 s{S_WQ}, s70, s7')
    a(f's_addc_u32 s{S_WQ+1}, s71, 0')
    a(f's_sub_u32 s{S_WQ+2}, 4194304, s7')
    a(f's_mov_b32 s{S_WQ+3}, 0x00020000')
    a('s_and_b32 s7, s2, 511')
    a('s_lshl_b32 s7, s7, 18')
    a(f's_add_u32 s{S_KV}, s66, s7')
    a(f's_addc_u32 s{S_KV+1}, s67, 0')
    a(f's_mov_b32 s{S_KV+2}, 262144')
    a(f's_mov_b32 s{S_KV+3}, 0x00020000')
    a('s_mul_i32 s7, s3, 20971520')
    a('s_mul_i32 s34, s5, 1310720')
    a('s_add_u32 s7, s7, s34')
    a('s_lshl_b32 s34, s6, 13')
    a('s_add_u32 s7, s7, s34')
    a(f's_add_u32 s{S_O}, s{P+20}, s7')
    a(f's_addc_u32 s{S_O+1}, s{P+21}, 0')
    a(f's_sub_u32 s{S_O+2}, 1310720, s34')
    a(f's_mov_b32 s{S_O+3}, 0x00020000')
    a(f's_lshl_b32 s{S_M0B}, s4, 12')
    a(f's_add_u32 s{S_M0B}, s{S_M0B}, s35')
    a(f's_lshl_b32 s{S_WQB}, s4, 17')
    a(f's_and_b32 s{S_KVB}, s4, 1')
    a(f's_lshl_b32 s{S_KVB}, s{S_KVB}, 12')
    a(f's_lshr_b32 s{S_ROT}, s2, 5')
    a(f's_xor_b32 s{S_ROT}, s{S_ROT}, s2')
    a(f's_and_b32 s{S_ROT}, s{S_ROT}, 31')
    a(f's_lshl_b32 s{S_ROT}, s{S_ROT}, 13')
    a(f's_add_u32 s{S_ROT}, s{S_ROT}, s{S_KVB}')
    a(f's_mov_b32 s{S_C}, {f32hex(SCALE_LOG2E)}')
    a(f's_mov_b32 s{S_THR}, {f32hex(8.0)}')
    a(f's_mov_b32 s{S_ONES}, 0x3f803f80')
    a('v_lshrrev_b32 v16, 4, v0')
    a('v_and_b32 v17, 15, v0')
    a('v_lshlrev_b32 v18, 1, v16')
    a('v_xor_b32 v18, v17, v18')
    a('v_lshlrev_b32 v18, 4, v18')
    a(f'v_lshl_add_u32 v{V_DMAW}, v16, 13, v18')
    a('v_lshl_add_u32 v19, v16, 8, v18')
    a('v_xor_b32 v20, v17, v16')
    a('s_cmp_lt_u32 s4, 2')
    a('s_cselect_b64 vcc, -1, 0')
    for i in range(4):
        a(f'v_xor_b32 v21, {4*i}, v20')
        a('v_lshlrev_b32 v21, 4, v21')
        a('v_lshl_add_u32 v21, v16, 8, v21')
        a(f'v_cndmask_b32 v{V_DMA+i}, v19, v21, vcc')
    a('v_and_b32 v16, 31, v0')
    a('v_lshrrev_b32 v17, 5, v0')
    a(f'v_lshlrev_b32 v{V_XOFF}, 4, v0')
    a('v_and_b32 v18, 15, v16')
    a('v_lshlrev_b32 v19, 3, v17')
    a('v_xor_b32 v18, v18, v19')
    a('v_lshlrev_b32 v18, 4, v18')
    a(f'v_lshl_add_u32 v{V_KADDR}, v16, 8, v18')
    a(f'v_add_u32 v{V_KADDR}, s35, v{V_KADDR}')
    a('v_bfe_u32 v18, v0, 2, 2')
    a('v_and_b32 v19, 3, v0')
    a('v_bfe_u32 v20, v0, 4, 1')
    a('v_and_b32 v21, 1, v19')
    a('v_lshlrev_b32 v21, 7, v21')
    a('v_lshl_add_u32 v21, v20, 4, v21')
    a('v_lshrrev_b32 v22, 1, v19')
    a('v_lshl_add_u32 v21, v22, 3, v21')
    a('v_lshl_add_u32 v21, v18, 8, v21')
    a('v_lshl_add_u32 v21, v17, 13, v21')
    a('v_add_u32 v21, s35, v21')
    a('v_add_u32 v21, 32768, v21')
    for mt in range(4):
        a(f'v_xor_b32 v22, {mt}, v18')
        a(f'v_lshl_add_u32 v{V_TR+mt}, v22, 5, v21')
    a('v_mul_u32_u24 v0, 7168, v17')
    a('v_add_u32 v0, 32768, v0')
    for i in range(64):
        a(f'v_mov_b32 v{V_ACC+i}, 0')

    CL = ('L', 'N')
    Q = {c: [] for c in CL}
    def DMA(tag, slot, mode, imm):
        if 'nodma' in EXP: return
        lab = a.newlabel('nodma')
        a(f's_cmp_gt_u32 s{S_W}, 3'); a(f's_cbranch_scc1 {lab}')
        a(f's_add_u32 m0, s{S_M0B}, {slot*SLOTB}')
        if mode == 'wq':
            a(f's_add_u32 s{S_SOFF}, s{S_WQB}, {imm*524288}')
            for i in range(4):
                a(f'buffer_load_dwordx4 v{V_DMAW}, s[{S_WQ}:{S_WQ+3}], s{S_SOFF} offen offset:{1024*i} lds')
                if i < 3: a(f's_add_u32 s{S_SOFF}, s{S_SOFF}, 31744')
        else:
            a(f's_add_u32 s{S_SOFF}, s{S_ROT}, {(imm*8192) & 0x3ffff}')
            a(f's_and_b32 s{S_SOFF}, s{S_SOFF}, 0x3ffff')
            for i in range(4):
                a(f'buffer_load_dwordx4 v{V_DMA+i}, s[{S_KV}:{S_KV+3}], s{S_SOFF} offen offset:{1024*i}{KVF} lds')
        a.label(lab)
        Q['L'].extend([tag] * 4)
    def XL(stage):
        base = V_X + 16 * (stage % 3)
        a(f's_mov_b32 s78, {4096*stage}')
        for u in range(4):
            a(f'buffer_load_dwordx4 v[{base+4*u}:{base+4*u+3}], v{V_XOFF}, s[{S_X}:{S_X+3}], s78 offen offset:{1024*u}')
        for c in CL: Q[c].extend([('X', stage)] * 4)
    def WAIT(tags):
        ns = {}
        for c in CL:
            q = Q[c]; last = -1
            for i, t in enumerate(q):
                if t in tags: last = i
            ns[c] = min(len(q) - 1 - last, 63)
            del q[:last + 1]
        if len(set(ns.values())) == 1:
            a(f's_waitcnt vmcnt({ns["L"]})'); return
        lN = a.newlabel('wn'); lj = a.newlabel('wj')
        a(f's_cmp_gt_u32 s{S_W}, 3'); a(f's_cbranch_scc1 {lN}')
        a(f's_waitcnt vmcnt({ns["L"]})'); a(f's_branch {lj}')
        a.label(lN); a(f's_waitcnt vmcnt({ns["N"]})')
        a.label(lj)
    QP = [2, 3, 4, 0, 1, 2, 3, 4]
    DMA(('W', 0), QP[0], 'wq', 0); XL(0); DMA(('W', 1), QP[1], 'wq', 1); XL(1)
    DMA(('W', 2), QP[2], 'wq', 2); XL(2)
    DMA(('W', 3), QP[3], 'wq', 3); DMA(('W', 4), QP[4], 'wq', 4)
    if 'nowopf' not in EXP:
        a('s_cmp_lt_u32 s38, 256')
        a(f's_cselect_b64 s[72:73], s[{P+8}:{P+9}], s[{P+18}:{P+19}]')
        a('s_mov_b32 s74, 4194304')
        a('s_mov_b32 s75, 0x00020000')
        a('s_and_b32 s76, s38, 255')
        a('s_lshl_b32 s76, s76, 14')
        a('s_min_u32 s77, s39, 7')
        a('s_lshl_b32 s77, s77, 11')
        a('s_add_u32 s76, s76, s77')
        a('v_mbcnt_lo_u32_b32 v88, -1, 0')
        a('v_mbcnt_hi_u32_b32 v88, -1, v88')
        a('v_lshlrev_b32 v88, 4, v88')
        a('buffer_load_dwordx4 v[92:95], v88, s[72:75], s76 offen')
        a('buffer_load_dwordx4 v[96:99], v88, s[72:75], s76 offen offset:1024')
        for c in CL: Q[c].extend([('P',)] * 2)
    for s in range(8):
        a.comment(f'==== Q stage {s}')
        WAIT([('W', s), ('X', s)])
        a('s_barrier')
        if 'tqs' in EXP and s == int(os.environ.get('TQS', '1')):
            a('s_memtime s[94:95]')
        if 1 <= s <= 3:
            DMA(('W', s + 4), QP[s + 4], 'wq', s + 4)
        elif s >= 4:
            DMA(('S', s - 4), s - 4, 'kv', s - 4)
        phys = QP[s]
        if phys == 4:
            for mt in range(4): a(f'v_add_u32 v{V_TR+mt}, 0x8000, v{V_TR+mt}')
            off0 = 0
        elif phys >= 2:
            off0 = (phys - 2) * SLOTB
        else:
            for mt in range(4): a(f'v_subrev_u32 v{V_TR+mt}, 0x8000, v{V_TR+mt}')
            off0 = phys * SLOTB
        xb = V_X + 16 * (s % 3)
        uses = [(u, mt) for u in range(4) for mt in range(4)]
        def rd(i):
            u, mt = uses[i]; fb = V_FR + 4 * (i % NFR)
            for part in range(2):
                a(f'ds_read_b64_tr_b16 v[{fb+2*part}:{fb+2*part+1}], v{V_TR+mt} offset:{off0 + (8*u+4*part)*256}')
        for i in range(NFR - 1): rd(i)
        for i in range(16):
            nxt = i + NFR - 1
            if nxt < 16: rd(nxt)
            outstanding = min(nxt, 15) - i
            a(f's_waitcnt lgkmcnt({2*outstanding})')
            u, mt = uses[i]; fb = V_FR + 4 * (i % NFR)
            a(f'v_mfma_f32_32x32x16_bf16 v[{V_ACC+16*mt}:{V_ACC+16*mt+15}], v[{fb}:{fb+3}], v[{xb+4*u}:{xb+4*u+3}], v[{V_ACC+16*mt}:{V_ACC+16*mt+15}]')
        if phys == 4:
            for mt in range(4): a(f'v_subrev_u32 v{V_TR+mt}, 0x8000, v{V_TR+mt}')
        elif phys < 2:
            for mt in range(4): a(f'v_add_u32 v{V_TR+mt}, 0x8000, v{V_TR+mt}')
        if s + 3 < 8:
            XL(s + 3)
    if 'tq' in EXP and 'tqs' not in EXP:
        a('s_memtime s[94:95]')
    a('s_nop 15')
    for i in range(64):
        a(f'v_mul_f32 v{V_ACC+i}, s{S_C}, v{V_ACC+i}')
    for p in range(32):
        a(f'v_cvt_pk_bf16_f32 v{V_Q+p}, v{V_ACC+2*p}, v{V_ACC+2*p+1}')
    for i in range(64):
        a(f'v_mov_b32 v{V_ACC+i}, 0')
    for mt in range(4):
        a(f'v_sub_u32 v{V_TR+mt}, v{V_TR+mt}, v0')
    a(f'v_mov_b32 v{V_L}, 0')

    def att_iter(slot, first=False):
        sb = slot * SLOTB
        S = V_S
        uses = [('K', i) for i in range(8)] + [('V', i) for i in range(8)]
        def rd_ops(i):
            kind, n = uses[i]; fb = V_FR + 4 * (i % NFR)
            if kind == 'K':
                if n == 0:
                    return [f'ds_read_b128 v[{fb}:{fb+3}], v{V_KADDR} offset:{sb}'], 1
                return [f'v_xor_b32 v{V_T2}, {16*n}, v{V_KADDR}', f'ds_read_b128 v[{fb}:{fb+3}], v{V_T2} offset:{sb}'], 1
            ks, mt = n // 4, n % 4
            return [f'ds_read_b64_tr_b16 v[{fb+2*part}:{fb+2*part+1}], v{V_TR+mt} offset:{sb + 8192 + (16*ks+8*part)*256}' for part in range(2)], 2
        cnt = [rd_ops(i)[1] for i in range(16)]
        issued = 0
        def issue_upto(n):
            nonlocal issued
            while issued < min(n, 16):
                for op in rd_ops(issued)[0]: a(op)
                issued += 1
        issue_upto(NFR - 1)
        for i in range(8):
            issue_upto(i + NFR)
            a(f's_waitcnt lgkmcnt({sum(cnt[i+1:issued])})')
            fb = V_FR + 4 * (i % NFR)
            c = ('0' if first else f'v[{V_NEGM}:{V_NEGM+15}]') if i == 0 else f'v[{S}:{S+15}]'
            a(f'v_mfma_f32_32x32x16_bf16 v[{S}:{S+15}], v[{fb}:{fb+3}], v[{V_Q+4*i}:{V_Q+4*i+3}], {c}')
        a('s_nop 11')
        a(f'v_max3_f32 v{V_T0}, v{S}, v{S+1}, v{S+2}')
        a(f'v_max3_f32 v{V_T1}, v{S+3}, v{S+4}, v{S+5}')
        a(f'v_max3_f32 v{V_T0}, v{V_T0}, v{S+6}, v{S+7}')
        a(f'v_max3_f32 v{V_T1}, v{V_T1}, v{S+8}, v{S+9}')
        a(f'v_max3_f32 v{V_T0}, v{V_T0}, v{S+10}, v{S+11}')
        a(f'v_max3_f32 v{V_T1}, v{V_T1}, v{S+12}, v{S+13}')
        a(f'v_max3_f32 v{V_T0}, v{V_T0}, v{S+14}, v{S+15}')
        a(f'v_max_f32 v{V_T0}, v{V_T0}, v{V_T1}')
        lab = None
        if not first:
            a(f'v_cmp_lt_f32 vcc, s{S_THR}, v{V_T0}')
            lab = a.newlabel('norescale')
            a(f's_cbranch_vccz {lab}')
        a(f'v_mov_b32 v{V_T1}, v{V_T0}')
        a('s_nop 1')
        a(f'v_permlane32_swap_b32 v{V_T0}, v{V_T1}')
        a(f'v_max_f32 v{V_T0}, v{V_T0}, v{V_T1}')
        if first:
            for i in range(16):
                a(f'v_sub_f32 v{V_NEGM+i}, 0, v{V_T0}')
        else:
            a(f'v_max_f32 v{V_T0}, 0, v{V_T0}')
            a(f'v_sub_f32 v{V_T1}, 0, v{V_T0}')
            a(f'v_exp_f32 v{V_T1}, v{V_T1}')
            for i in range(16):
                a(f'v_sub_f32 v{V_NEGM+i}, v{V_NEGM+i}, v{V_T0}')
            a(f'v_mul_f32 v{V_L}, v{V_L}, v{V_T1}')
            for i in range(64):
                a(f'v_mul_f32 v{V_ACC+i}, v{V_ACC+i}, v{V_T1}')
        for i in range(16):
            a(f'v_sub_f32 v{S+i}, v{S+i}, v{V_T0}')
        if lab: a.label(lab)
        for i in range(16):
            a(f'v_exp_f32 v{S+i}, v{S+i}')
        a('s_nop 0')
        for p in range(8):
            a(f'v_cvt_pk_bf16_f32 v{S+p}, v{S+2*p}, v{S+2*p+1}')
        for p in range(8):
            a(f'v_dot2c_f32_bf16 v{V_L}, s{S_ONES}, v{S+p}')
        for i in range(8, 16):
            issue_upto(i + NFR)
            a(f's_waitcnt lgkmcnt({sum(cnt[i+1:issued])})')
            fb = V_FR + 4 * (i % NFR)
            n = i - 8; ks, mt = n // 4, n % 4
            a(f'v_mfma_f32_32x32x16_bf16 v[{V_ACC+16*mt}:{V_ACC+16*mt+15}], v[{fb}:{fb+3}], v[{S+4*ks}:{S+4*ks+3}], v[{V_ACC+16*mt}:{V_ACC+16*mt+15}]')

    def dma_loop(slot):
        if 'nodma' in EXP: return
        lab = a.newlabel('nodma')
        a(f's_cmp_gt_u32 s{S_W}, 3'); a(f's_cbranch_scc1 {lab}')
        a(f's_add_u32 m0, s{S_M0B}, {slot*SLOTB}')
        a('s_nop 0')
        for i in range(4):
            a(f'buffer_load_dwordx4 v{V_DMA+i}, s[{S_KV}:{S_KV+3}], s{S_T} offen offset:{1024*i}{KVF} lds')
        a.label(lab)
    a('s_waitcnt vmcnt(12)')
    a('s_barrier')
    att_iter(0, first=True)
    a(f's_add_u32 s{S_T}, s{S_ROT}, {4*8192}')
    a(f's_and_b32 s{S_T}, s{S_T}, 0x3ffff')
    a(f's_mov_b32 s{S_CNT}, 0')
    a.label('att_loop')
    for k in range(4):
        t = 1 + k
        a('s_waitcnt vmcnt(8)')
        a('s_barrier')
        dma_loop((t + 3) % 4)
        a(f's_add_u32 s{S_T}, s{S_T}, 8192')
        a(f's_and_b32 s{S_T}, s{S_T}, 0x3ffff')
        att_iter(t % 4)
    a(f's_add_u32 s{S_CNT}, s{S_CNT}, 1')
    a(f's_cmp_lt_u32 s{S_CNT}, 7')
    a('s_cbranch_scc1 att_loop')
    for t in range(29, 32):
        a.comment(f'==== att iter {t} (tail)')
        a(f's_waitcnt vmcnt({4*(31-t)})')
        a('s_barrier')
        att_iter(t % 4)
    a('s_nop 15')
    a(f'v_mov_b32 v{V_T1}, v{V_L}')
    a('v_mbcnt_lo_u32_b32 v0, -1, 0')
    a('v_mbcnt_hi_u32_b32 v0, -1, v0')
    a(f'v_permlane32_swap_b32 v{V_L}, v{V_T1}')
    a(f'v_add_f32 v{V_L}, v{V_L}, v{V_T1}')
    a(f'v_rcp_f32 v{V_L}, v{V_L}')
    a('v_and_b32 v16, 31, v0')
    a('v_lshrrev_b32 v17, 5, v0')
    a('v_lshlrev_b32 v18, 12, v17')
    a('v_lshl_add_u32 v18, v16, 4, v18')
    a('s_lshl_b32 s7, s4, 18')
    a('v_add_u32 v18, s7, v18')
    for i in range(64):
        a(f'v_mul_f32 v{V_ACC+i}, v{V_ACC+i}, v{V_L}')
    for p in range(32):
        a(f'v_cvt_pk_bf16_f32 v{V_ACC+p}, v{V_ACC+2*p}, v{V_ACC+2*p+1}')
    for n in range(8):
        hfp, u = n // 4, n % 4
        a(f'buffer_store_dwordx4 v[{V_ACC+4*n}:{V_ACC+4*n+3}], v18, s[{S_O}:{S_O+3}], 0 offen offset:{u*1024 + hfp*512}')
    if 'timing' in EXP:
        a('s_memtime s[84:85]')
        a('s_memrealtime s[86:87]')
        a('s_waitcnt lgkmcnt(0)')
        a('s_sub_u32 s84, s84, s80')
        a('s_sub_u32 s86, s86, s82')
        if 'tq' in EXP:
            a('s_sub_u32 s86, s94, s80')
        a('s_mov_b32 s90, 256')
        a('s_mov_b32 s91, 0x00020000')
        a('s_and_b32 s92, s2, 31')
        a('s_lshl_b32 s92, s92, 3')
        a('v_mov_b32 v0, s92')
        a('v_mov_b32 v2, s84')
        a('v_mov_b32 v3, s86')
        a('s_lshr_b32 s93, s2, 5')
        a(f's_cmp_eq_u32 s93, {os.environ.get("TB", "0")}')
        a('s_cbranch_scc0 attn_end')
        a('buffer_store_dwordx2 v[2:3], v0, s[88:91], 0 offen')
    a.label('attn_end')
    a('s_endpgm')
    return NV

OWF = os.environ.get('OWF','')
OBF = os.environ.get('OBF','')
def gen_oproj(a):
    R = int(os.environ.get('OR', '6'))
    NSTG = 32
    V_DMAW = 1
    V_AOFF = 2
    V_TR = 3
    V_OOFF = 5
    V_RED = 6
    V_FR = 8
    V_B = 40
    V_ACC = 136
    NV = 168
    S_W = 4
    S_A = 8; S_WO = 12; S_OUT = 16
    S_M0B = 20; S_SOFF = 21; S_WB = 22; S_G = 23
    SL = 8192
    a.label('oproj_kernel')
    a('s_cmp_ge_u32 s2, 256')
    a('s_cbranch_scc1 oproj_end')
    a('s_load_dwordx2 s[40:41], s[0:1], 32')
    a('s_load_dwordx2 s[42:43], s[0:1], 72')
    a('s_load_dwordx2 s[44:45], s[0:1], 80')
    a('s_load_dwordx2 s[46:47], s[0:1], 96')
    if 'xcc' in EXP:
        a('s_load_dwordx2 s[88:89], s[0:1], 88')
        a('s_getreg_b32 s84, hwreg(HW_REG_XCC_ID)')
        a('s_waitcnt lgkmcnt(0)')
        a('s_mov_b32 s90, 256')
        a('s_mov_b32 s91, 0x00020000')
        a('s_lshl_b32 s92, s2, 2')
        a('v_mov_b32 v2, s92')
        a('v_mov_b32 v3, s84')
        a('buffer_store_dword v3, v2, s[88:91], 0 offen')
    a('v_lshrrev_b32 v1, 6, v0')
    a('v_and_b32 v0, 63, v0')
    a('s_bfe_u32 s3, s2, 0x10002')
    a('v_readfirstlane_b32 s4, v1')
    a('s_and_b32 s5, s2, 3')
    a('s_lshl_b32 s5, s5, 2')
    a('s_bfe_u32 s6, s2, 0x20003')
    a('s_add_u32 s5, s5, s6')
    a('s_lshr_b32 s6, s2, 5')
    a('s_cmp_ge_u32 s4, 5')
    a(f's_cselect_b32 s{S_G}, 1, 0')
    a(f's_mul_i32 s7, s{S_G}, 5')
    a('s_sub_u32 s4, s4, s7')
    a('s_waitcnt lgkmcnt(0)')
    a('s_cmp_eq_u32 s3, 0')
    a('s_cselect_b64 s[40:41], s[40:41], s[42:43]')
    a('s_mul_i32 s7, s3, 20971520')
    a('s_mul_i32 s34, s5, 1310720')
    a('s_add_u32 s7, s7, s34')
    a(f's_lshl_b32 s36, s{S_G}, 17')
    a('s_add_u32 s7, s7, s36')
    a(f's_add_u32 s{S_A}, s46, s7')
    a(f's_addc_u32 s{S_A+1}, s47, 0')
    a(f's_sub_u32 s{S_A+2}, 1310720, s36')
    a(f's_mov_b32 s{S_A+3}, 0x00020000')
    a('s_lshl_b32 s7, s6, 7')
    a(f's_lshl_b32 s36, s{S_G}, 21')
    a('s_add_u32 s36, s36, s7')
    a(f's_add_u32 s{S_WO}, s40, s36')
    a(f's_addc_u32 s{S_WO+1}, s41, 0')
    a(f's_sub_u32 s{S_WO+2}, 4194304, s36')
    a(f's_mov_b32 s{S_WO+3}, 0x00020000')
    a('s_mul_i32 s34, s5, 327680')
    a('s_lshl_b32 s35, s3, 10')
    a('s_add_u32 s35, s35, s7')
    a('s_add_u32 s34, s34, s35')
    a(f's_add_u32 s{S_OUT}, s44, s34')
    a(f's_addc_u32 s{S_OUT+1}, s45, 0')
    a(f's_sub_u32 s{S_OUT+2}, 327680, s35')
    a(f's_mov_b32 s{S_OUT+3}, 0x00020000')
    a(f's_mul_i32 s37, s{S_G}, {R*SL}')
    a(f's_lshl_b32 s{S_M0B}, s4, 11')
    a(f's_add_u32 s{S_M0B}, s{S_M0B}, s37')
    a(f's_lshl_b32 s{S_WB}, s4, 14')
    a('v_lshrrev_b32 v16, 3, v0')
    a('v_and_b32 v17, 7, v0')
    a('v_bfe_u32 v18, v16, 1, 1')
    a('v_lshlrev_b32 v18, 1, v18')
    a('v_xor_b32 v18, v17, v18')
    a('v_lshlrev_b32 v18, 4, v18')
    a(f'v_lshl_add_u32 v{V_DMAW}, v16, 10, v18')
    a('v_and_b32 v16, 31, v0')
    a('v_lshrrev_b32 v17, 5, v0')
    a('v_lshlrev_b32 v18, 6, v17')
    a(f'v_lshlrev_b32 v{V_AOFF}, 4, v0')
    a(f'v_lshl_add_u32 v{V_OOFF}, v16, 11, v18')
    a('s_lshl_b32 s7, s4, 18')
    a(f'v_add_u32 v{V_AOFF}, s7, v{V_AOFF}')
    a('s_lshl_b32 s7, s4, 16')
    a(f'v_add_u32 v{V_OOFF}, s7, v{V_OOFF}')
    a('s_lshl_b32 s7, s4, 13')
    a(f'v_lshlrev_b32 v{V_RED}, 4, v0')
    a(f'v_add_u32 v{V_RED}, s7, v{V_RED}')
    a('v_bfe_u32 v18, v0, 2, 2')
    a('v_and_b32 v19, 3, v0')
    a('v_bfe_u32 v20, v0, 4, 1')
    a('v_and_b32 v21, 1, v19')
    a('v_lshlrev_b32 v21, 6, v21')
    a('v_lshl_add_u32 v21, v20, 4, v21')
    a('v_lshrrev_b32 v22, 1, v19')
    a('v_lshl_add_u32 v21, v22, 3, v21')
    a('v_lshl_add_u32 v21, v18, 7, v21')
    a('v_lshl_add_u32 v21, v17, 12, v21')
    a('v_add_u32 v21, s37, v21')
    a('v_lshrrev_b32 v18, 1, v18')
    for mt in range(2):
        a(f'v_xor_b32 v22, {mt}, v18')
        a(f'v_lshl_add_u32 v{V_TR+mt}, v22, 5, v21')
    for i in range(32):
        a(f'v_mov_b32 v{V_ACC+i}, 0')
    QL = []; QN = []
    def issue(st):
        slot = st % R
        lab = a.newlabel('nodma')
        a(f's_cmp_gt_u32 s{S_W}, 3')
        a(f's_cbranch_scc1 {lab}')
        a(f's_add_u32 m0, s{S_M0B}, {slot*SL}')
        a(f's_add_u32 s{S_SOFF}, s{S_WB}, {st*65536 if "owsame" not in EXP else 0}')
        if 'onodma' not in EXP:
            a(f'buffer_load_dwordx4 v{V_DMAW}, s[{S_WO}:{S_WO+3}], s{S_SOFF} offen{OWF} lds')
            a(f's_add_u32 s{S_SOFF}, s{S_SOFF}, 7168')
            a(f'buffer_load_dwordx4 v{V_DMAW}, s[{S_WO}:{S_WO+3}], s{S_SOFF} offen offset:1024{OWF} lds')
        a.label(lab)
        a(f's_mov_b32 s{S_SOFF}, {4096*st if "obsame" not in EXP else 0}')
        for u in range(4 if 'onob' not in EXP else 0):
            a(f'buffer_load_dwordx4 v[{V_B+16*slot+4*u}:{V_B+16*slot+4*u+3}], v{V_AOFF}, s[{S_A}:{S_A+3}], s{S_SOFF} offen offset:{1024*u}{OBF}')
        QL.extend([st] * 6); QN.extend([st] * 4)
    def WAIT(st):
        ns = []
        for q in (QL, QN):
            last = max(i for i, t in enumerate(q) if t == st)
            ns.append(len(q) - 1 - last); del q[:last + 1]
        if ns[0] == ns[1]:
            a(f's_waitcnt vmcnt({ns[0]})'); return
        l1 = a.newlabel('w4'); l2 = a.newlabel('wj')
        a(f's_cmp_gt_u32 s{S_W}, 3')
        a(f's_cbranch_scc1 {l1}')
        a(f's_waitcnt vmcnt({ns[0]})')
        a(f's_branch {l2}')
        a.label(l1)
        a(f's_waitcnt vmcnt({ns[1]})')
        a.label(l2)
    for st in range(R - 1):
        issue(st)
    for st in range(NSTG):
        slot = st % R
        WAIT(st)
        a('s_barrier')
        if st + R - 1 < NSTG:
            issue(st + R - 1)
        for u in range(4):
            fb = V_FR + 8 * u
            for mt in range(2):
                for part in range(2):
                    a(f'ds_read_b64_tr_b16 v[{fb+4*mt+2*part}:{fb+4*mt+2*part+1}], v{V_TR+mt} offset:{slot*SL + (8*u+4*part)*128}')
        for u in range(4):
            a(f's_waitcnt lgkmcnt({4*(3-u)})')
            fb = V_FR + 8 * u
            for mt in range(2):
                a(f'v_mfma_f32_32x32x16_bf16 v[{V_ACC+16*mt}:{V_ACC+16*mt+15}], v[{fb+4*mt}:{fb+4*mt+3}], v[{V_B+16*slot+4*u}:{V_B+16*slot+4*u+3}], v[{V_ACC+16*mt}:{V_ACC+16*mt+15}]')
    a('s_nop 15')
    a('s_barrier')
    a(f's_cmp_eq_u32 s{S_G}, 0')
    a('s_cbranch_scc1 op_g0')
    for n in range(8):
        a(f'ds_write_b128 v{V_RED}, v[{V_ACC+4*n}:{V_ACC+4*n+3}] offset:{1024*n}')
    a('s_waitcnt lgkmcnt(0)')
    a('s_barrier')
    a('s_endpgm')
    a.label('op_g0')
    a('s_barrier')
    for n in range(8):
        a(f'ds_read_b128 v[{V_B+4*n}:{V_B+4*n+3}], v{V_RED} offset:{1024*n}')
    a('s_waitcnt lgkmcnt(0)')
    for i in range(32):
        a(f'v_add_f32 v{V_ACC+i}, v{V_ACC+i}, v{V_B+i}')
    for p in range(16):
        a(f'v_cvt_pk_bf16_f32 v{V_ACC+p}, v{V_ACC+2*p}, v{V_ACC+2*p+1}')
    for n in range(4):
        a(f'buffer_store_dwordx4 v[{V_ACC+4*n}:{V_ACC+4*n+3}], v{V_OOFF}, s[{S_OUT}:{S_OUT+3}], 0 offen offset:{16*n}')
    a.label('oproj_end')
    a('s_endpgm')
    return NV


XW_OFF = 2 * 20971520
def gen_repack(a):
    a.label('repack_kernel')
    a('s_cmp_ge_u32 s2, 160')
    a('s_cbranch_scc1 repack_end')
    a('s_load_dwordx2 s[8:9], s[0:1], 0')
    a('s_load_dwordx2 s[10:11], s[0:1], 40')
    a('s_load_dwordx2 s[12:13], s[0:1], 96')
    a('v_lshrrev_b32 v1, 6, v0')
    a('v_and_b32 v0, 63, v0')
    a('s_nop 0')
    a('v_readfirstlane_b32 s4, v1')
    a('s_cmp_ge_u32 s2, 80')
    a('s_cselect_b32 s3, 1, 0')
    a('s_mul_i32 s5, s3, 80')
    a('s_sub_u32 s5, s2, s5')
    a('s_waitcnt lgkmcnt(0)')
    a('s_cmp_eq_u32 s3, 0')
    a('s_cselect_b64 s[8:9], s[8:9], s[10:11]')
    a('s_lshl_b32 s6, s5, 15')
    a('s_add_u32 s16, s8, s6')
    a('s_addc_u32 s17, s9, 0')
    a('s_mov_b32 s18, 32768')
    a('s_mov_b32 s19, 0x00020000')
    a('s_lshl_b32 s6, s2, 15')
    a(f's_add_u32 s6, s6, {XW_OFF}')
    a('s_add_u32 s20, s12, s6')
    a('s_addc_u32 s21, s13, 0')
    a('s_mov_b32 s22, 32768')
    a('s_mov_b32 s23, 0x00020000')
    a('v_and_b32 v2, 31, v0')
    a('v_lshrrev_b32 v3, 5, v0')
    a('v_lshlrev_b32 v4, 6, v3')
    a('v_lshl_add_u32 v4, v2, 10, v4')
    a('s_lshl_b32 s7, s4, 8')
    a('v_add_u32 v4, s7, v4')
    a('v_lshlrev_b32 v5, 4, v0')
    a('s_lshl_b32 s7, s4, 13')
    a('v_add_u32 v5, s7, v5')
    for j in range(8):
        st, u = j // 4, j % 4
        a(f'buffer_load_dwordx4 v[{8+4*j}:{11+4*j}], v4, s[16:19], 0 offen offset:{128*st+16*u}')
    for j in range(8):
        st, u = j // 4, j % 4
        a(f's_waitcnt vmcnt({7-j if j < 7 else 0})') if j == 0 else None
        if j > 0: a(f's_waitcnt vmcnt({7-j+j})') if False else None
    a('s_waitcnt vmcnt(0)')
    for j in range(8):
        st, u = j // 4, j % 4
        if st == 0:
            a(f'buffer_store_dwordx4 v[{8+4*j}:{11+4*j}], v5, s[20:23], 0 offen offset:{1024*u}')
    a('v_add_u32 v5, 4096, v5')
    for j in range(4, 8):
        u = j % 4
        a(f'buffer_store_dwordx4 v[{8+4*j}:{11+4*j}], v5, s[20:23], 0 offen offset:{1024*u}')
    a.label('repack_end')
    a('s_endpgm')
    return 48

def kd(name, nv):
    return f""".section .rodata,"a"
.p2align 6
.amdhsa_kernel {name}
  .amdhsa_next_free_vgpr {nv}
  .amdhsa_next_free_sgpr 96
  .amdhsa_accum_offset {(nv+3)//4*4}
  .amdhsa_group_segment_fixed_size 0
  .amdhsa_kernarg_size 104
  .amdhsa_user_sgpr_count 2
  .amdhsa_user_sgpr_kernarg_segment_ptr 1
  .amdhsa_system_sgpr_workgroup_id_x 1
.end_amdhsa_kernel
"""

def main():
    out = HEADER
    out += '; @launch kernel=repack_kernel grid=(160,1,1) block=(256,1,1) lds=0\n'
    out += '; @launch kernel=attn_kernel grid=(512,1,1) block=(640,1,1) lds=163840\n'
    out += '; @launch kernel=oproj_kernel grid=(256,1,1) block=(640,1,1) lds=98304\n'
    out += '.amdgcn_target "amdgcn-amd-amdhsa--gfx950"\n.text\n'
    a = Asm()
    nv1 = gen_attn(a)
    out += '.globl attn_kernel\n.p2align 8\n.type attn_kernel,@function\n' + a.text()
    a = Asm(); a.lbl = 10000
    nv2 = gen_oproj(a)
    out += '.globl oproj_kernel\n.p2align 8\n.type oproj_kernel,@function\n' + a.text()
    a = Asm(); a.lbl = 20000
    nv0 = gen_repack(a)
    out += '.globl repack_kernel\n.p2align 8\n.type repack_kernel,@function\n' + a.text()
    out += kd('repack_kernel', nv0) + kd('attn_kernel', nv1) + kd('oproj_kernel', nv2)
    open(sys.argv[1] if len(sys.argv) > 1 else 'concat_heads__mha_block_cached__gqa_block_cached__near_ridge.s', 'w').write(out)

main()
```

```python
import sys, os
EXP = os.environ.get('EXP','')

HEADER = open('concat_heads__mha_block_cached__gqa_block_cached__near_ridge.s.ref').read().split('; Override launch')[0]

class Asm:
    def __init__(self):
        self.lines = []
        self.lbl = 0
    def __call__(self, s):
        if 'nolds' in EXP and s.startswith('ds_read'): return
        if 'nobar' in EXP and s.startswith('s_barrier'): return
        if 'nomfma' in EXP and s.startswith('v_mfma'): return
        if 'm16' in EXP and s.startswith('v_mfma_f32_32x32x16_bf16'):
            import re
            m = re.match(r'v_mfma_f32_32x32x16_bf16 v\[(\d+):\d+\], (v\[\d+:\d+\]), (v\[\d+:\d+\]), (.*)', s)
            d = int(m.group(1)); A = m.group(2); B = m.group(3); C = m.group(4)
            for j in range(2):
                if C == '0': c = '0'
                else:
                    c0 = int(re.match(r'v\[(\d+):', C).group(1)); c = f'v[{c0+4*j}:{c0+4*j+3}]'
                self.lines.append(f'    v_mfma_f32_16x16x32_bf16 v[{d+4*j}:{d+4*j+3}], {A}, {B}, {c}')
            return
        self.lines.append('    ' + s)
    def label(self, name):
        self.lines.append(name + ':')
    def newlabel(self, p='L'):
        self.lbl += 1
        return f'{p}_{self.lbl}'
    def comment(self, s):
        self.lines.append('    ; ' + s)
    def text(self):
        return '\n'.join(self.lines) + '\n'

def vr(base, n=1):
    return f'v{base}' if n == 1 else f'v[{base}:{base+n-1}]'
def sr(base, n=1):
    return f's{base}' if n == 1 else f's[{base}:{base+n-1}]'

NSLOT = 4
SLOTB = 16384
SCALE_LOG2E = (128 ** -0.5) * 1.4426950408889634
THR_RAW = 8.0 / SCALE_LOG2E

import struct
def f32hex(x):
    return '0x%08x' % struct.unpack('<I', struct.pack('<f', x))[0]

KVF = ' nt'
for f in ('sc0','sc1','nt'):
    if 'kv'+f in EXP: KVF += ' '+f
def gen_attn(a):
    V_DMA = 1; V_TR = 5; V_KADDR = 9; V_LANE = 10; V_L = 11; V_HFB = 12; V_T0 = 13; V_T1 = 14; V_T2 = 15
    V_DMAW = 0; V_XOFF = 14
    V_FR = 16; NFR = 6
    V_S = 40; V_NEGM = 56; V_Q = 72; V_X = 40; V_ACC = 104
    NV = 168
    S_W = 4; S_X = 8; S_WQ = 12; S_KV = 16; S_O = 20
    S_M0B = 24; S_SOFF = 25; S_T = 26; S_CNT = 27; S_C = 28; S_THR = 29; S_WQB = 30; S_KVB = 31; S_ROT = 33
    S_LB = 35; S_ONES = 37; S_IT = 36; S_WQN = 44+28
    P = 40
    a.label('attn_kernel')
    a('s_cmp_ge_u32 s2, 256')
    a('s_cbranch_scc1 attn_end')
    a(f's_load_dwordx16 s[{P}:{P+15}], s[0:1], 0')
    a(f's_load_dwordx4 s[{P+16}:{P+19}], s[0:1], 64')
    a(f's_load_dwordx2 s[{P+20}:{P+21}], s[0:1], 96')
    if 'timing' in EXP:
        a('s_memtime s[80:81]')
        a('s_memrealtime s[82:83]')
        a('s_load_dwordx2 s[88:89], s[0:1], 88')
    a('v_lshrrev_b32 v1, 6, v0')
    a(f'v_and_b32 v{V_LANE}, 63, v0')
    a('s_nop 0')
    a('v_readfirstlane_b32 s4, v1')
    a('s_nop 3')
    a('s_mov_b32 s38, s2')
    a('s_mov_b32 s39, s4')
    a('s_cmp_ge_u32 s4, 5')
    a('s_cselect_b32 s34, 1, 0')
    a('s_and_b32 s5, s2, 15')
    a('s_lshr_b32 s6, s2, 4')
    a('s_lshl_b32 s6, s6, 1')
    a('s_add_u32 s6, s6, s34')
    a('s_mul_i32 s7, s34, 5')
    a('s_sub_u32 s4, s4, s7')
    a(f's_mul_i32 s{S_LB}, s34, 81920')
    a(f's_lshl_b32 s{S_M0B}, s4, 12')
    a(f's_add_u32 s{S_M0B}, s{S_M0B}, s{S_LB}')
    a(f's_lshl_b32 s{S_WQB}, s4, 17')
    a(f's_and_b32 s{S_KVB}, s4, 1')
    a(f's_lshl_b32 s{S_KVB}, s{S_KVB}, 12')
    a(f's_lshr_b32 s{S_ROT}, s6, 1')
    a(f's_xor_b32 s{S_ROT}, s{S_ROT}, s5')
    a(f's_lshl_b32 s{S_ROT}, s{S_ROT}, 1')
    a(f's_add_u32 s{S_ROT}, s{S_ROT}, s34')
    a(f's_and_b32 s{S_ROT}, s{S_ROT}, 31')
    a(f's_lshl_b32 s{S_ROT}, s{S_ROT}, 13')
    a(f's_add_u32 s{S_ROT}, s{S_ROT}, s{S_KVB}')
    a(f's_mov_b32 s{S_C}, {f32hex(SCALE_LOG2E)}')
    a(f's_mov_b32 s{S_THR}, {f32hex(8.0)}')
    a(f's_mov_b32 s{S_ONES}, 0x3f803f80')
    a(f's_mov_b32 s{S_IT}, 0')
    L = V_LANE
    a(f'v_lshrrev_b32 v16, 4, v{L}')
    a(f'v_and_b32 v17, 15, v{L}')
    a('v_lshlrev_b32 v18, 1, v16')
    a('v_xor_b32 v18, v17, v18')
    a('v_lshlrev_b32 v18, 4, v18')
    a(f'v_lshl_add_u32 v{V_DMAW}, v16, 13, v18')
    a('v_lshl_add_u32 v19, v16, 8, v18')
    a('v_xor_b32 v20, v17, v16')
    a('s_cmp_lt_u32 s4, 2')
    a('s_cselect_b64 vcc, -1, 0')
    for i in range(4):
        a(f'v_xor_b32 v21, {4*i}, v20')
        a('v_lshlrev_b32 v21, 4, v21')
        a('v_lshl_add_u32 v21, v16, 8, v21')
        a(f'v_cndmask_b32 v{V_DMA+i}, v19, v21, vcc')
    a(f'v_and_b32 v16, 31, v{L}')
    a(f'v_lshrrev_b32 v17, 5, v{L}')
    a('v_and_b32 v18, 15, v16')
    a('v_lshlrev_b32 v19, 3, v17')
    a('v_xor_b32 v18, v18, v19')
    a('v_lshlrev_b32 v18, 4, v18')
    a(f'v_lshl_add_u32 v{V_KADDR}, v16, 8, v18')
    a(f'v_add_u32 v{V_KADDR}, s{S_LB}, v{V_KADDR}')
    a(f'v_bfe_u32 v18, v{L}, 2, 2')
    a(f'v_and_b32 v19, 3, v{L}')
    a(f'v_bfe_u32 v20, v{L}, 4, 1')
    a('v_and_b32 v21, 1, v19')
    a('v_lshlrev_b32 v21, 7, v21')
    a('v_lshl_add_u32 v21, v20, 4, v21')
    a('v_lshrrev_b32 v22, 1, v19')
    a('v_lshl_add_u32 v21, v22, 3, v21')
    a('v_lshl_add_u32 v21, v18, 8, v21')
    a('v_lshl_add_u32 v21, v17, 13, v21')
    a(f'v_add_u32 v21, s{S_LB}, v21')
    a('v_add_u32 v21, 32768, v21')
    for mt in range(4):
        a(f'v_xor_b32 v22, {mt}, v18')
        a(f'v_lshl_add_u32 v{V_TR+mt}, v22, 5, v21')
    a(f'v_mul_u32_u24 v{V_HFB}, 7168, v17')
    a(f'v_add_u32 v{V_HFB}, 32768, v{V_HFB}')
    a('s_waitcnt lgkmcnt(0)')
    a('s_lshl_b32 s7, s6, 8')
    a(f's_add_u32 s{S_WQ}, s{P+6}, s7')
    a(f's_addc_u32 s{S_WQ+1}, s{P+7}, 0')
    a(f's_sub_u32 s{S_WQ+2}, 4194304, s7')
    a(f's_mov_b32 s{S_WQ+3}, 0x00020000')
    a(f's_add_u32 s{S_WQN}, s{P+16}, s7')
    a(f's_addc_u32 s{S_WQN+1}, s{P+17}, 0')
    a(f's_sub_u32 s{S_WQN+2}, 4194304, s7')
    a(f's_mov_b32 s{S_WQN+3}, 0x00020000')

    CL = ('L', 'N')
    Q = {c: [] for c in CL}
    def DMA(tag, slot, mode, imm, srd=None):
        if 'nodma' in EXP: return
        lab = a.newlabel('nodma')
        a(f's_cmp_gt_u32 s{S_W}, 3'); a(f's_cbranch_scc1 {lab}')
        a(f's_add_u32 m0, s{S_M0B}, {slot*SLOTB}')
        if mode == 'wq':
            sr_ = srd if srd is not None else S_WQ
            a(f's_add_u32 s{S_SOFF}, s{S_WQB}, {imm*524288}')
            for i in range(4):
                a(f'buffer_load_dwordx4 v{V_DMAW}, s[{sr_}:{sr_+3}], s{S_SOFF} offen offset:{1024*i} lds')
                if i < 3: a(f's_add_u32 s{S_SOFF}, s{S_SOFF}, 31744')
        else:
            a(f's_add_u32 s{S_SOFF}, s{S_ROT}, {(imm*8192) & 0x3ffff}')
            a(f's_and_b32 s{S_SOFF}, s{S_SOFF}, 0x3ffff')
            for i in range(4):
                a(f'buffer_load_dwordx4 v{V_DMA+i}, s[{S_KV}:{S_KV+3}], s{S_SOFF} offen offset:{1024*i}{KVF} lds')
        a.label(lab)
        Q['L'].extend([tag] * 4)
    def XL(stage):
        base = V_X + 16 * (stage % 3)
        a(f's_mov_b32 s78, {4096*stage}')
        for u in range(4):
            a(f'buffer_load_dwordx4 v[{base+4*u}:{base+4*u+3}], v{V_XOFF}, s[{S_X}:{S_X+3}], s78 offen offset:{1024*u}')
        for c in CL: Q[c].extend([('X', stage)] * 4)
    def WAIT(tags):
        ns = {}
        for c in CL:
            q = Q[c]; last = -1
            for i, t in enumerate(q):
                if t in tags: last = i
            ns[c] = min(len(q) - 1 - last, 63)
            del q[:last + 1]
        if len(set(ns.values())) == 1:
            a(f's_waitcnt vmcnt({ns["L"]})'); return
        lN = a.newlabel('wn'); lj = a.newlabel('wj')
        a(f's_cmp_gt_u32 s{S_W}, 3'); a(f's_cbranch_scc1 {lN}')
        a(f's_waitcnt vmcnt({ns["L"]})'); a(f's_branch {lj}')
        a.label(lN); a(f's_waitcnt vmcnt({ns["N"]})')
        a.label(lj)
    QP = [2, 3, 4, 0, 1, 2, 3, 4]
    for s in range(5):
        DMA(('W', s), QP[s], 'wq', s)
    if 'nowopf' not in EXP:
        a('s_mov_b32 s66, 4194304')
        a('s_mov_b32 s67, 0x00020000')
        a('s_lshl_b32 s76, s38, 14')
        a('s_min_u32 s77, s39, 7')
        a('s_lshl_b32 s77, s77, 11')
        a('s_add_u32 s76, s76, s77')
        a(f'v_lshlrev_b32 v32, 4, v{L}')
        for blk in range(2):
            a(f's_mov_b64 s[64:65], s[{P+8+10*blk}:{P+9+10*blk}]')
            a(f'buffer_load_dwordx4 v[{16+8*blk}:{19+8*blk}], v32, s[64:67], s76 offen')
            a(f'buffer_load_dwordx4 v[{20+8*blk}:{23+8*blk}], v32, s[64:67], s76 offen offset:1024')
        for c in CL: Q[c].extend([('P',)] * 4)

    a.label('task_loop')
    a(f's_cmp_eq_u32 s{S_IT}, 0')
    a(f's_cselect_b64 s[66:67], s[{P+2}:{P+3}], s[{P+12}:{P+13}]')
    a(f's_cselect_b64 s[68:69], s[{P+4}:{P+5}], s[{P+14}:{P+15}]')
    a('s_cmp_lt_u32 s4, 2')
    a('s_cselect_b64 s[66:67], s[66:67], s[68:69]')
    a(f's_lshl_b32 s3, s{S_IT}, 4')
    a('s_add_u32 s3, s3, s5')
    a('s_mul_i32 s7, s3, 5')
    a('s_add_u32 s7, s7, s4')
    a('s_lshl_b32 s7, s7, 15')
    a(f's_add_u32 s7, s7, {XW_OFF}')
    a(f's_add_u32 s{S_X}, s{P+20}, s7')
    a(f's_addc_u32 s{S_X+1}, s{P+21}, 0')
    a(f's_mov_b32 s{S_X+2}, 32768')
    a(f's_mov_b32 s{S_X+3}, 0x00020000')
    a('s_lshl_b32 s7, s5, 5')
    a('s_add_u32 s7, s7, s6')
    a('s_lshl_b32 s7, s7, 18')
    a(f's_add_u32 s{S_KV}, s66, s7')
    a(f's_addc_u32 s{S_KV+1}, s67, 0')
    a(f's_mov_b32 s{S_KV+2}, 262144')
    a(f's_mov_b32 s{S_KV+3}, 0x00020000')
    a('s_mul_i32 s7, s3, 1310720')
    a('s_lshl_b32 s34, s6, 13')
    a('s_add_u32 s7, s7, s34')
    a(f's_add_u32 s{S_O}, s{P+20}, s7')
    a(f's_addc_u32 s{S_O+1}, s{P+21}, 0')
    a(f's_sub_u32 s{S_O+2}, 1310720, s34')
    a(f's_mov_b32 s{S_O+3}, 0x00020000')
    a(f'v_lshlrev_b32 v{V_XOFF}, 4, v{L}')
    XL(0); XL(1); XL(2)
    for i in range(64):
        a(f'v_mov_b32 v{V_ACC+i}, 0')
    for s in range(8):
        a.comment(f'==== Q stage {s}')
        WAIT([('W', s), ('X', s)])
        a('s_barrier')
        if 1 <= s <= 3:
            DMA(('W', s + 4), QP[s + 4], 'wq', s + 4)
        elif s >= 4:
            DMA(('S', s - 4), s - 4, 'kv', s - 4)
        phys = QP[s]
        if phys == 4:
            for mt in range(4): a(f'v_add_u32 v{V_TR+mt}, 0x8000, v{V_TR+mt}')
            off0 = 0
        elif phys >= 2:
            off0 = (phys - 2) * SLOTB
        else:
            for mt in range(4): a(f'v_subrev_u32 v{V_TR+mt}, 0x8000, v{V_TR+mt}')
            off0 = phys * SLOTB
        xb = V_X + 16 * (s % 3)
        uses = [(u, mt) for u in range(4) for mt in range(4)]
        def rd(i):
            u, mt = uses[i]; fb = V_FR + 4 * (i % NFR)
            for part in range(2):
                a(f'ds_read_b64_tr_b16 v[{fb+2*part}:{fb+2*part+1}], v{V_TR+mt} offset:{off0 + (8*u+4*part)*256}')
        for i in range(NFR - 1): rd(i)
        for i in range(16):
            nxt = i + NFR - 1
            if nxt < 16: rd(nxt)
            outstanding = min(nxt, 15) - i
            a(f's_waitcnt lgkmcnt({2*outstanding})')
            u, mt = uses[i]; fb = V_FR + 4 * (i % NFR)
            a(f'v_mfma_f32_32x32x16_bf16 v[{V_ACC+16*mt}:{V_ACC+16*mt+15}], v[{fb}:{fb+3}], v[{xb+4*u}:{xb+4*u+3}], v[{V_ACC+16*mt}:{V_ACC+16*mt+15}]')
        if phys == 4:
            for mt in range(4): a(f'v_subrev_u32 v{V_TR+mt}, 0x8000, v{V_TR+mt}')
        elif phys < 2:
            for mt in range(4): a(f'v_add_u32 v{V_TR+mt}, 0x8000, v{V_TR+mt}')
        if s + 3 < 8:
            XL(s + 3)
    a('s_nop 15')
    for i in range(64):
        a(f'v_mul_f32 v{V_ACC+i}, s{S_C}, v{V_ACC+i}')
    for p in range(32):
        a(f'v_cvt_pk_bf16_f32 v{V_Q+p}, v{V_ACC+2*p}, v{V_ACC+2*p+1}')
    for i in range(64):
        a(f'v_mov_b32 v{V_ACC+i}, 0')
    for mt in range(4):
        a(f'v_sub_u32 v{V_TR+mt}, v{V_TR+mt}, v{V_HFB}')
    a(f'v_mov_b32 v{V_L}, 0')

    def att_iter(slot, first=False):
        sb = slot * SLOTB
        S = V_S
        uses = [('K', i) for i in range(8)] + [('V', i) for i in range(8)]
        def rd_ops(i):
            kind, n = uses[i]; fb = V_FR + 4 * (i % NFR)
            if kind == 'K':
                if n == 0:
                    return [f'ds_read_b128 v[{fb}:{fb+3}], v{V_KADDR} offset:{sb}'], 1
                return [f'v_xor_b32 v{V_T2}, {16*n}, v{V_KADDR}', f'ds_read_b128 v[{fb}:{fb+3}], v{V_T2} offset:{sb}'], 1
            ks, mt = n // 4, n % 4
            return [f'ds_read_b64_tr_b16 v[{fb+2*part}:{fb+2*part+1}], v{V_TR+mt} offset:{sb + 8192 + (16*ks+8*part)*256}' for part in range(2)], 2
        cnt = [rd_ops(i)[1] for i in range(16)]
        issued = 0
        def issue_upto(n):
            nonlocal issued
            while issued < min(n, 16):
                for op in rd_ops(issued)[0]: a(op)
                issued += 1
        issue_upto(NFR - 1)
        for i in range(8):
            issue_upto(i + NFR)
            a(f's_waitcnt lgkmcnt({sum(cnt[i+1:issued])})')
            fb = V_FR + 4 * (i % NFR)
            c = ('0' if first else f'v[{V_NEGM}:{V_NEGM+15}]') if i == 0 else f'v[{S}:{S+15}]'
            a(f'v_mfma_f32_32x32x16_bf16 v[{S}:{S+15}], v[{fb}:{fb+3}], v[{V_Q+4*i}:{V_Q+4*i+3}], {c}')
        a('s_nop 11')
        a(f'v_max3_f32 v{V_T0}, v{S}, v{S+1}, v{S+2}')
        a(f'v_max3_f32 v{V_T1}, v{S+3}, v{S+4}, v{S+5}')
        a(f'v_max3_f32 v{V_T0}, v{V_T0}, v{S+6}, v{S+7}')
        a(f'v_max3_f32 v{V_T1}, v{V_T1}, v{S+8}, v{S+9}')
        a(f'v_max3_f32 v{V_T0}, v{V_T0}, v{S+10}, v{S+11}')
        a(f'v_max3_f32 v{V_T1}, v{V_T1}, v{S+12}, v{S+13}')
        a(f'v_max3_f32 v{V_T0}, v{V_T0}, v{S+14}, v{S+15}')
        a(f'v_max_f32 v{V_T0}, v{V_T0}, v{V_T1}')
        lab = None
        if not first:
            a(f'v_cmp_lt_f32 vcc, s{S_THR}, v{V_T0}')
            lab = a.newlabel('norescale')
            a(f's_cbranch_vccz {lab}')
        a(f'v_mov_b32 v{V_T1}, v{V_T0}')
        a('s_nop 1')
        a(f'v_permlane32_swap_b32 v{V_T0}, v{V_T1}')
        a(f'v_max_f32 v{V_T0}, v{V_T0}, v{V_T1}')
        if first:
            for i in range(16):
                a(f'v_sub_f32 v{V_NEGM+i}, 0, v{V_T0}')
        else:
            a(f'v_max_f32 v{V_T0}, 0, v{V_T0}')
            a(f'v_sub_f32 v{V_T1}, 0, v{V_T0}')
            a(f'v_exp_f32 v{V_T1}, v{V_T1}')
            for i in range(16):
                a(f'v_sub_f32 v{V_NEGM+i}, v{V_NEGM+i}, v{V_T0}')
            a(f'v_mul_f32 v{V_L}, v{V_L}, v{V_T1}')
            for i in range(64):
                a(f'v_mul_f32 v{V_ACC+i}, v{V_ACC+i}, v{V_T1}')
        for i in range(16):
            a(f'v_sub_f32 v{S+i}, v{S+i}, v{V_T0}')
        if lab: a.label(lab)
        for i in range(16):
            a(f'v_exp_f32 v{S+i}, v{S+i}')
        a('s_nop 0')
        for p in range(8):
            a(f'v_cvt_pk_bf16_f32 v{S+p}, v{S+2*p}, v{S+2*p+1}')
        for p in range(8):
            a(f'v_dot2c_f32_bf16 v{V_L}, s{S_ONES}, v{S+p}')
        for i in range(8, 16):
            issue_upto(i + NFR)
            a(f's_waitcnt lgkmcnt({sum(cnt[i+1:issued])})')
            fb = V_FR + 4 * (i % NFR)
            n = i - 8; ks, mt = n // 4, n % 4
            a(f'v_mfma_f32_32x32x16_bf16 v[{V_ACC+16*mt}:{V_ACC+16*mt+15}], v[{fb}:{fb+3}], v[{S+4*ks}:{S+4*ks+3}], v[{V_ACC+16*mt}:{V_ACC+16*mt+15}]')

    def dma_loop(slot):
        if 'nodma' in EXP: return
        lab = a.newlabel('nodma')
        a(f's_cmp_gt_u32 s{S_W}, 3'); a(f's_cbranch_scc1 {lab}')
        a(f's_add_u32 m0, s{S_M0B}, {slot*SLOTB}')
        a('s_nop 0')
        for i in range(4):
            a(f'buffer_load_dwordx4 v{V_DMA+i}, s[{S_KV}:{S_KV+3}], s{S_T} offen offset:{1024*i}{KVF} lds')
        a.label(lab)
    a('s_waitcnt vmcnt(12)')
    a('s_barrier')
    att_iter(0, first=True)
    a(f's_add_u32 s{S_T}, s{S_ROT}, {4*8192}')
    a(f's_and_b32 s{S_T}, s{S_T}, 0x3ffff')
    a(f's_mov_b32 s{S_CNT}, 0')
    a.label('att_loop')
    for k in range(4):
        t = 1 + k
        a('s_waitcnt vmcnt(8)')
        a('s_barrier')
        dma_loop((t + 3) % 4)
        a(f's_add_u32 s{S_T}, s{S_T}, 8192')
        a(f's_and_b32 s{S_T}, s{S_T}, 0x3ffff')
        att_iter(t % 4)
    a(f's_add_u32 s{S_CNT}, s{S_CNT}, 1')
    a(f's_cmp_lt_u32 s{S_CNT}, 7')
    a('s_cbranch_scc1 att_loop')
    def epilogue():
        a(f'v_mov_b32 v{V_T1}, v{V_L}')
        a(f'v_and_b32 v16, 31, v{L}')
        a(f'v_lshrrev_b32 v17, 5, v{L}')
        a(f'v_permlane32_swap_b32 v{V_L}, v{V_T1}')
        a(f'v_add_f32 v{V_L}, v{V_L}, v{V_T1}')
        a(f'v_rcp_f32 v{V_L}, v{V_L}')
        a('v_lshlrev_b32 v18, 12, v17')
        a('v_lshl_add_u32 v18, v16, 4, v18')
        a('s_lshl_b32 s7, s4, 18')
        a('v_add_u32 v18, s7, v18')
        for i in range(64):
            a(f'v_mul_f32 v{V_ACC+i}, v{V_ACC+i}, v{V_L}')
        for p in range(32):
            a(f'v_cvt_pk_bf16_f32 v{V_ACC+p}, v{V_ACC+2*p}, v{V_ACC+2*p+1}')
        for n in range(8):
            hfp, u = n // 4, n % 4
            a(f'buffer_store_dwordx4 v[{V_ACC+4*n}:{V_ACC+4*n+3}], v18, s[{S_O}:{S_O+3}], 0 offen offset:{u*1024 + hfp*512}')
    a(f's_cmp_eq_u32 s{S_IT}, 1')
    a('s_cbranch_scc1 tail_last')
    a('s_waitcnt vmcnt(8)'); a('s_barrier')
    DMA(('W', 2), QP[2], 'wq', 2, srd=S_WQN); DMA(('W', 3), QP[3], 'wq', 3, srd=S_WQN)
    att_iter(29 % 4)
    a('s_waitcnt vmcnt(12)'); a('s_barrier')
    DMA(('W', 4), QP[4], 'wq', 4, srd=S_WQN)
    att_iter(30 % 4)
    a('s_waitcnt vmcnt(12)'); a('s_barrier')
    DMA(('W', 0), QP[0], 'wq', 0, srd=S_WQN)
    att_iter(31 % 4)
    a('s_nop 15')
    a('s_barrier')
    DMA(('W', 1), QP[1], 'wq', 1, srd=S_WQN)
    epilogue()
    for i in range(4):
        a(f's_mov_b32 s{S_WQ+i}, s{S_WQN+i}')
    for mt in range(4):
        a(f'v_add_u32 v{V_TR+mt}, v{V_TR+mt}, v{V_HFB}')
    a(f's_mov_b32 s{S_IT}, 1')
    a('s_branch task_loop')
    a.label('tail_last')
    for t in range(29, 32):
        a(f's_waitcnt vmcnt({4*(31-t)})')
        a('s_barrier')
        att_iter(t % 4)
    a('s_nop 15')
    epilogue()
    if 'timing' in EXP:
        a('s_memtime s[84:85]')
        a('s_memrealtime s[86:87]')
        a('s_waitcnt lgkmcnt(0)')
        a('s_sub_u32 s84, s84, s80')
        a('s_sub_u32 s86, s86, s82')
        a('s_mov_b32 s90, 256')
        a('s_mov_b32 s91, 0x00020000')
        a('s_and_b32 s92, s38, 31')
        a('s_lshl_b32 s92, s92, 3')
        a('v_mov_b32 v0, s92')
        a('v_mov_b32 v2, s84')
        a('v_mov_b32 v3, s86')
        a('s_cmp_lt_u32 s38, 32')
        a('s_cbranch_scc0 attn_end')
        a('buffer_store_dwordx2 v[2:3], v0, s[88:91], 0 offen')
    a.label('attn_end')
    a('s_endpgm')
    return NV

OWF = os.environ.get('OWF','')
OBF = os.environ.get('OBF','')
def gen_oproj(a):
    R = int(os.environ.get('OR', '6'))
    NSTG = 32
    V_DMAW = 1
    V_AOFF = 2
    V_TR = 3
    V_OOFF = 5
    V_RED = 6
    V_FR = 8
    V_B = 40
    V_ACC = 136
    NV = 168
    S_W = 4
    S_A = 8; S_WO = 12; S_OUT = 16
    S_M0B = 20; S_SOFF = 21; S_WB = 22; S_G = 23
    SL = 8192
    a.label('oproj_kernel')
    a('s_cmp_ge_u32 s2, 256')
    a('s_cbranch_scc1 oproj_end')
    a('s_load_dwordx2 s[40:41], s[0:1], 32')
    a('s_load_dwordx2 s[42:43], s[0:1], 72')
    a('s_load_dwordx2 s[44:45], s[0:1], 80')
    a('s_load_dwordx2 s[46:47], s[0:1], 96')
    if 'xcc' in EXP:
        a('s_load_dwordx2 s[88:89], s[0:1], 88')
        a('s_getreg_b32 s84, hwreg(HW_REG_XCC_ID)')
        a('s_waitcnt lgkmcnt(0)')
        a('s_mov_b32 s90, 256')
        a('s_mov_b32 s91, 0x00020000')
        a('s_lshl_b32 s92, s2, 2')
        a('v_mov_b32 v2, s92')
        a('v_mov_b32 v3, s84')
        a('buffer_store_dword v3, v2, s[88:91], 0 offen')
    a('v_lshrrev_b32 v1, 6, v0')
    a('v_and_b32 v0, 63, v0')
    a('s_bfe_u32 s3, s2, 0x10002')
    a('v_readfirstlane_b32 s4, v1')
    a('s_and_b32 s5, s2, 3')
    a('s_lshl_b32 s5, s5, 2')
    a('s_bfe_u32 s6, s2, 0x20003')
    a('s_add_u32 s5, s5, s6')
    a('s_lshr_b32 s6, s2, 5')
    a('s_cmp_ge_u32 s4, 5')
    a(f's_cselect_b32 s{S_G}, 1, 0')
    a(f's_mul_i32 s7, s{S_G}, 5')
    a('s_sub_u32 s4, s4, s7')
    a('s_waitcnt lgkmcnt(0)')
    a('s_cmp_eq_u32 s3, 0')
    a('s_cselect_b64 s[40:41], s[40:41], s[42:43]')
    a('s_mul_i32 s7, s3, 20971520')
    a('s_mul_i32 s34, s5, 1310720')
    a('s_add_u32 s7, s7, s34')
    a(f's_lshl_b32 s36, s{S_G}, 17')
    a('s_add_u32 s7, s7, s36')
    a(f's_add_u32 s{S_A}, s46, s7')
    a(f's_addc_u32 s{S_A+1}, s47, 0')
    a(f's_sub_u32 s{S_A+2}, 1310720, s36')
    a(f's_mov_b32 s{S_A+3}, 0x00020000')
    a('s_lshl_b32 s7, s6, 7')
    a(f's_lshl_b32 s36, s{S_G}, 21')
    a('s_add_u32 s36, s36, s7')
    a(f's_add_u32 s{S_WO}, s40, s36')
    a(f's_addc_u32 s{S_WO+1}, s41, 0')
    a(f's_sub_u32 s{S_WO+2}, 4194304, s36')
    a(f's_mov_b32 s{S_WO+3}, 0x00020000')
    a('s_mul_i32 s34, s5, 327680')
    a('s_lshl_b32 s35, s3, 10')
    a('s_add_u32 s35, s35, s7')
    a('s_add_u32 s34, s34, s35')
    a(f's_add_u32 s{S_OUT}, s44, s34')
    a(f's_addc_u32 s{S_OUT+1}, s45, 0')
    a(f's_sub_u32 s{S_OUT+2}, 327680, s35')
    a(f's_mov_b32 s{S_OUT+3}, 0x00020000')
    a(f's_mul_i32 s37, s{S_G}, {R*SL}')
    a(f's_lshl_b32 s{S_M0B}, s4, 11')
    a(f's_add_u32 s{S_M0B}, s{S_M0B}, s37')
    a(f's_lshl_b32 s{S_WB}, s4, 14')
    a('v_lshrrev_b32 v16, 3, v0')
    a('v_and_b32 v17, 7, v0')
    a('v_bfe_u32 v18, v16, 1, 1')
    a('v_lshlrev_b32 v18, 1, v18')
    a('v_xor_b32 v18, v17, v18')
    a('v_lshlrev_b32 v18, 4, v18')
    a(f'v_lshl_add_u32 v{V_DMAW}, v16, 10, v18')
    a('v_and_b32 v16, 31, v0')
    a('v_lshrrev_b32 v17, 5, v0')
    a('v_lshlrev_b32 v18, 6, v17')
    a(f'v_lshlrev_b32 v{V_AOFF}, 4, v0')
    a(f'v_lshl_add_u32 v{V_OOFF}, v16, 11, v18')
    a('s_lshl_b32 s7, s4, 18')
    a(f'v_add_u32 v{V_AOFF}, s7, v{V_AOFF}')
    a('s_lshl_b32 s7, s4, 16')
    a(f'v_add_u32 v{V_OOFF}, s7, v{V_OOFF}')
    a('s_lshl_b32 s7, s4, 13')
    a(f'v_lshlrev_b32 v{V_RED}, 4, v0')
    a(f'v_add_u32 v{V_RED}, s7, v{V_RED}')
    a('v_bfe_u32 v18, v0, 2, 2')
    a('v_and_b32 v19, 3, v0')
    a('v_bfe_u32 v20, v0, 4, 1')
    a('v_and_b32 v21, 1, v19')
    a('v_lshlrev_b32 v21, 6, v21')
    a('v_lshl_add_u32 v21, v20, 4, v21')
    a('v_lshrrev_b32 v22, 1, v19')
    a('v_lshl_add_u32 v21, v22, 3, v21')
    a('v_lshl_add_u32 v21, v18, 7, v21')
    a('v_lshl_add_u32 v21, v17, 12, v21')
    a('v_add_u32 v21, s37, v21')
    a('v_lshrrev_b32 v18, 1, v18')
    for mt in range(2):
        a(f'v_xor_b32 v22, {mt}, v18')
        a(f'v_lshl_add_u32 v{V_TR+mt}, v22, 5, v21')
    for i in range(32):
        a(f'v_mov_b32 v{V_ACC+i}, 0')
    QL = []; QN = []
    def issue(st):
        slot = st % R
        lab = a.newlabel('nodma')
        a(f's_cmp_gt_u32 s{S_W}, 3')
        a(f's_cbranch_scc1 {lab}')
        a(f's_add_u32 m0, s{S_M0B}, {slot*SL}')
        a(f's_add_u32 s{S_SOFF}, s{S_WB}, {st*65536 if "owsame" not in EXP else 0}')
        if 'onodma' not in EXP:
            a(f'buffer_load_dwordx4 v{V_DMAW}, s[{S_WO}:{S_WO+3}], s{S_SOFF} offen{OWF} lds')
            a(f's_add_u32 s{S_SOFF}, s{S_SOFF}, 7168')
            a(f'buffer_load_dwordx4 v{V_DMAW}, s[{S_WO}:{S_WO+3}], s{S_SOFF} offen offset:1024{OWF} lds')
        a.label(lab)
        a(f's_mov_b32 s{S_SOFF}, {4096*st if "obsame" not in EXP else 0}')
        for u in range(4 if 'onob' not in EXP else 0):
            a(f'buffer_load_dwordx4 v[{V_B+16*slot+4*u}:{V_B+16*slot+4*u+3}], v{V_AOFF}, s[{S_A}:{S_A+3}], s{S_SOFF} offen offset:{1024*u}{OBF}')
        QL.extend([st] * 6); QN.extend([st] * 4)
    def WAIT(st):
        ns = []
        for q in (QL, QN):
            last = max(i for i, t in enumerate(q) if t == st)
            ns.append(len(q) - 1 - last); del q[:last + 1]
        if ns[0] == ns[1]:
            a(f's_waitcnt vmcnt({ns[0]})'); return
        l1 = a.newlabel('w4'); l2 = a.newlabel('wj')
        a(f's_cmp_gt_u32 s{S_W}, 3')
        a(f's_cbranch_scc1 {l1}')
        a(f's_waitcnt vmcnt({ns[0]})')
        a(f's_branch {l2}')
        a.label(l1)
        a(f's_waitcnt vmcnt({ns[1]})')
        a.label(l2)
    for st in range(R - 1):
        issue(st)
    for st in range(NSTG):
        slot = st % R
        WAIT(st)
        a('s_barrier')
        if st + R - 1 < NSTG:
            issue(st + R - 1)
        for u in range(4):
            fb = V_FR + 8 * u
            for mt in range(2):
                for part in range(2):
                    a(f'ds_read_b64_tr_b16 v[{fb+4*mt+2*part}:{fb+4*mt+2*part+1}], v{V_TR+mt} offset:{slot*SL + (8*u+4*part)*128}')
        for u in range(4):
            a(f's_waitcnt lgkmcnt({4*(3-u)})')
            fb = V_FR + 8 * u
            for mt in range(2):
                a(f'v_mfma_f32_32x32x16_bf16 v[{V_ACC+16*mt}:{V_ACC+16*mt+15}], v[{fb+4*mt}:{fb+4*mt+3}], v[{V_B+16*slot+4*u}:{V_B+16*slot+4*u+3}], v[{V_ACC+16*mt}:{V_ACC+16*mt+15}]')
    a('s_nop 15')
    a('s_barrier')
    a(f's_cmp_eq_u32 s{S_G}, 0')
    a('s_cbranch_scc1 op_g0')
    for n in range(8):
        a(f'ds_write_b128 v{V_RED}, v[{V_ACC+4*n}:{V_ACC+4*n+3}] offset:{1024*n}')
    a('s_waitcnt lgkmcnt(0)')
    a('s_barrier')
    a('s_endpgm')
    a.label('op_g0')
    a('s_barrier')
    for n in range(8):
        a(f'ds_read_b128 v[{V_B+4*n}:{V_B+4*n+3}], v{V_RED} offset:{1024*n}')
    a('s_waitcnt lgkmcnt(0)')
    for i in range(32):
        a(f'v_add_f32 v{V_ACC+i}, v{V_ACC+i}, v{V_B+i}')
    for p in range(16):
        a(f'v_cvt_pk_bf16_f32 v{V_ACC+p}, v{V_ACC+2*p}, v{V_ACC+2*p+1}')
    for n in range(4):
        a(f'buffer_store_dwordx4 v[{V_ACC+4*n}:{V_ACC+4*n+3}], v{V_OOFF}, s[{S_OUT}:{S_OUT+3}], 0 offen offset:{16*n}')
    a.label('oproj_end')
    a('s_endpgm')
    return NV


XW_OFF = 2 * 20971520
def gen_repack(a):
    a.label('repack_kernel')
    a('s_cmp_ge_u32 s2, 160')
    a('s_cbranch_scc1 repack_end')
    a('s_load_dwordx2 s[8:9], s[0:1], 0')
    a('s_load_dwordx2 s[10:11], s[0:1], 40')
    a('s_load_dwordx2 s[12:13], s[0:1], 96')
    a('v_lshrrev_b32 v1, 6, v0')
    a('v_and_b32 v0, 63, v0')
    a('s_nop 0')
    a('v_readfirstlane_b32 s4, v1')
    a('s_cmp_ge_u32 s2, 80')
    a('s_cselect_b32 s3, 1, 0')
    a('s_mul_i32 s5, s3, 80')
    a('s_sub_u32 s5, s2, s5')
    a('s_waitcnt lgkmcnt(0)')
    a('s_cmp_eq_u32 s3, 0')
    a('s_cselect_b64 s[8:9], s[8:9], s[10:11]')
    a('s_lshl_b32 s6, s5, 15')
    a('s_add_u32 s16, s8, s6')
    a('s_addc_u32 s17, s9, 0')
    a('s_mov_b32 s18, 32768')
    a('s_mov_b32 s19, 0x00020000')
    a('s_lshl_b32 s6, s2, 15')
    a(f's_add_u32 s6, s6, {XW_OFF}')
    a('s_add_u32 s20, s12, s6')
    a('s_addc_u32 s21, s13, 0')
    a('s_mov_b32 s22, 32768')
    a('s_mov_b32 s23, 0x00020000')
    a('v_and_b32 v2, 31, v0')
    a('v_lshrrev_b32 v3, 5, v0')
    a('v_lshlrev_b32 v4, 6, v3')
    a('v_lshl_add_u32 v4, v2, 10, v4')
    a('s_lshl_b32 s7, s4, 8')
    a('v_add_u32 v4, s7, v4')
    a('v_lshlrev_b32 v5, 4, v0')
    a('s_lshl_b32 s7, s4, 13')
    a('v_add_u32 v5, s7, v5')
    for j in range(8):
        st, u = j // 4, j % 4
        a(f'buffer_load_dwordx4 v[{8+4*j}:{11+4*j}], v4, s[16:19], 0 offen offset:{128*st+16*u}')
    for j in range(8):
        st, u = j // 4, j % 4
        a(f's_waitcnt vmcnt({7-j if j < 7 else 0})') if j == 0 else None
        if j > 0: a(f's_waitcnt vmcnt({7-j+j})') if False else None
    a('s_waitcnt vmcnt(0)')
    for j in range(8):
        st, u = j // 4, j % 4
        if st == 0:
            a(f'buffer_store_dwordx4 v[{8+4*j}:{11+4*j}], v5, s[20:23], 0 offen offset:{1024*u}')
    a('v_add_u32 v5, 4096, v5')
    for j in range(4, 8):
        u = j % 4
        a(f'buffer_store_dwordx4 v[{8+4*j}:{11+4*j}], v5, s[20:23], 0 offen offset:{1024*u}')
    a.label('repack_end')
    a('s_endpgm')
    return 48

def kd(name, nv):
    return f""".section .rodata,"a"
.p2align 6
.amdhsa_kernel {name}
  .amdhsa_next_free_vgpr {nv}
  .amdhsa_next_free_sgpr 96
  .amdhsa_accum_offset {(nv+3)//4*4}
  .amdhsa_group_segment_fixed_size 0
  .amdhsa_kernarg_size 104
  .amdhsa_user_sgpr_count 2
  .amdhsa_user_sgpr_kernarg_segment_ptr 1
  .amdhsa_system_sgpr_workgroup_id_x 1
.end_amdhsa_kernel
"""

def main():
    out = HEADER
    out += '; @launch kernel=repack_kernel grid=(160,1,1) block=(256,1,1) lds=0\n'
    out += '; @launch kernel=attn_kernel grid=(256,1,1) block=(640,1,1) lds=163840\n'
    out += '; @launch kernel=oproj_kernel grid=(256,1,1) block=(640,1,1) lds=98304\n'
    out += '.amdgcn_target "amdgcn-amd-amdhsa--gfx950"\n.text\n'
    a = Asm()
    nv1 = gen_attn(a)
    out += '.globl attn_kernel\n.p2align 8\n.type attn_kernel,@function\n' + a.text()
    a = Asm(); a.lbl = 10000
    nv2 = gen_oproj(a)
    out += '.globl oproj_kernel\n.p2align 8\n.type oproj_kernel,@function\n' + a.text()
    a = Asm(); a.lbl = 20000
    nv0 = gen_repack(a)
    out += '.globl repack_kernel\n.p2align 8\n.type repack_kernel,@function\n' + a.text()
    out += kd('repack_kernel', nv0) + kd('attn_kernel', nv1) + kd('oproj_kernel', nv2)
    open(sys.argv[1] if len(sys.argv) > 1 else 'concat_heads__mha_block_cached__gqa_block_cached__near_ridge.s', 'w').write(out)

main()
```
